```python
import torch

def _softmax(x, axis=-1):
    return torch.softmax(x, dim=axis)

def _gelu(x):
    return torch.nn.functional.gelu(x, approximate='tanh')

def _silu(x):
    return torch.nn.functional.silu(x)

def _sigmoid(x):
    return torch.sigmoid(x)

def _layernorm(x, axis=-1, eps=1e-05):
    m = x.mean(dim=axis, keepdim=True)
    v = x.var(dim=axis, keepdim=True, unbiased=False)
    return (x - m) / torch.sqrt(v + eps)

def _scatter_add(tgt, idx, src, axis=0):
    return tgt.clone().index_add_(axis, idx, src)

def _segment_sum(src, seg, n):
    out = torch.zeros((n,) + src.shape[1:], dtype=src.dtype)
    return out.index_add_(0, seg, src)

def _pad(x, pw):
    flat = tuple((v for pair in reversed(pw) for v in pair))
    return torch.nn.functional.pad(x, flat)
kernel_name = 'adaLN_cond__softmax_full_mha__glu_gated_geglu__prompt'

def setup_inputs():

    _w = lambda a: (lambda t: t.to(torch.bfloat16) if t.is_floating_point() else t)(torch.as_tensor(a))

    def _A_setup():
        B, S, D = (1, 2048, 640)
        return {'x': _w((lambda *s: torch.randn(*s, dtype=torch.bfloat16) * 0.05)(B, S, D)), 'wqkv': _w((lambda *s: torch.randn(*s, dtype=torch.bfloat16) * 0.05)(D, 3 * D)), 'wo': _w((lambda *s: torch.randn(*s, dtype=torch.bfloat16) * 0.05)(D, D))}
    _A_in = _A_setup()

    def _B_setup():
        B, S, Dm, Df = (1, 2048, 640, 1536)
        return {'x': _w((lambda *s: torch.randn(*s, dtype=torch.bfloat16) * 0.05)(B, S, Dm)), 'w_gate': _w((lambda *s: torch.randn(*s, dtype=torch.bfloat16) * 0.8)(Dm, Df) * Dm ** (-0.5)), 'w_up': _w((lambda *s: torch.randn(*s, dtype=torch.bfloat16) * 0.8)(Dm, Df) * Dm ** (-0.5)), 'w_down': _w((lambda *s: torch.randn(*s, dtype=torch.bfloat16) * 0.8)(Df, Dm) * Df ** (-0.5))}
    _B_in = _B_setup()
    return {'A_x': _A_in['x'], 'A_wqkv': _A_in['wqkv'], 'A_wo': _A_in['wo'], 'B_x': _B_in['x'], 'B_w_gate': _B_in['w_gate'], 'B_w_up': _B_in['w_up'], 'B_w_down': _B_in['w_down'], 'c': _w((lambda *s: torch.randn(*s, dtype=torch.bfloat16) * 0.1)(1, 640) * 8.0), 'w_mod': _w((lambda *s: torch.randn(*s, dtype=torch.bfloat16) * 0.1)(640, 6 * 640) * 640 ** (-0.5) * 8.0)}

def reference(A_x, A_wqkv, A_wo, B_x, B_w_gate, B_w_up, B_w_down, c, w_mod):

    def _A_ref(x, wqkv, wo):
        B, S, D = x.shape
        H = 32
        Dh = D // H
        qkv = (lambda x, *d: x.permute(*d))((x @ wqkv).reshape(B, S, 3, H, Dh), 2, 0, 3, 1, 4)
        q, k, v = (qkv[0], qkv[1], qkv[2])
        scale = Dh ** (-0.5)
        scores = torch.einsum('bhqd,bhkd->bhqk', q, k) * scale
        p = _softmax(scores, axis=-1)
        o = torch.einsum('bhqk,bhkd->bhqd', p, v)
        return (lambda x, *d: x.permute(*d))(o, 0, 2, 1, 3).reshape(B, S, D) @ wo

    def _B_ref(x, w_gate, w_up, w_down):
        g = torch.einsum('bsd,df->bsf', x, w_gate)
        u = torch.einsum('bsd,df->bsf', x, w_up)
        h = _gelu(g) * u
        return torch.einsum('bsf,fd->bsd', h, w_down)
    x = A_x
    mod = (_silu(c) @ w_mod).reshape(c.shape[0], 6, 1, -1)
    sa, ca, ga, sb, cb, gb = (mod[:, 0].clone(), mod[:, 1].clone(), mod[:, 2].clone(), mod[:, 3].clone(), mod[:, 4].clone(), mod[:, 5].clone())
    h = _layernorm(x, axis=-1) * (1 + ca) + sa
    x = x + ga * _A_ref(h, A_wqkv, A_wo)
    h = _layernorm(x, axis=-1) * (1 + cb) + sb
    x = x + gb * _B_ref(h, B_w_gate, B_w_up, B_w_down)
    return x
```

```python
import re

class K:
    def __init__(self, name):
        self.name = name
        self.L = []
        self.uid = 0
    def __call__(self, s):
        for l in s.split("\n"):
            l = l.strip()
            if l: self.L.append(l)
    def label(self, base):
        self.uid += 1
        return f"L_{self.name}_{base}_{self.uid}"
    def text(self):
        out = []
        for l in self.L:
            out.append(l if l.endswith(":") or l.startswith(".") else "    " + l)
        return "\n".join(out)

def vr(a, n=1):
    return f"v{a}" if n == 1 else f"v[{a}:{a+n-1}]"
def sr(a, n=1):
    return f"s{a}" if n == 1 else f"s[{a}:{a+n-1}]"
def ar(a, n=1):
    return f"a{a}" if n == 1 else f"a[{a}:{a+n-1}]"

_reg = re.compile(r"\b([vas])(\d+)\b|\b([vas])\[(\d+):(\d+)\]|\b(vcc|exec|m0|scc)\b")
def regs(op):
    s = set()
    for m in _reg.finditer(op):
        if m.group(1): s.add((m.group(1), int(m.group(2))))
        elif m.group(3):
            for i in range(int(m.group(4)), int(m.group(5))+1): s.add((m.group(3), i))
        else: s.add((m.group(6), 0))
    return s
TRANS = ("v_exp_", "v_log_", "v_rcp_", "v_rsq_", "v_sqrt_", "v_sin_", "v_cos_")
def passes(mn):
    if "32x32x4_2b" in mn: return 16
    if "32x32" in mn: return 8
    if "16x16" in mn: return 4
    return 16
class I:
    def __init__(self, line):
        self.line = line
        body = line.split(";")[0].strip()
        p = body.split(None, 1)
        self.mn = p[0]
        ops = [o.strip() for o in re.split(r",(?![^\[]*\])", p[1])] if len(p) > 1 else []
        self.ops = ops
        mn = self.mn
        self.mfma = mn.startswith("v_mfma") or mn.startswith("v_smfmac")
        self.valu = mn.startswith("v_") and not self.mfma
        self.trans = mn.startswith(TRANS)
        self.dot = mn.startswith("v_dot")
        self.vmem = mn.startswith(("buffer_", "global_", "flat_"))
        self.ds = mn.startswith("ds_")
        self.salu = mn.startswith("s_")
        self.dpp = " row_" in body or "quad_perm" in body or "_dpp" in mn or "wave_" in body
        self.perm = mn.startswith("v_permlane")
        self.states = 1
        if mn == "s_nop": self.states = int(ops[0], 0) + 1
        w, r = set(), set()
        lds = self.vmem and body.endswith(" lds") or mn.startswith("global_load_lds")
        self.ldsdma = lds
        self.store = self.vmem and ("store" in mn or "atomic" in mn)
        self.srcc = set(); self.ab = set(); self.sdata = set()
        if self.mfma:
            w = regs(ops[0]); self.ab = regs(ops[1]) | regs(ops[2])
            if mn.startswith("v_smfmac"):
                self.srcc = set(w); self.ab |= regs(ops[3].split()[0])
            else: self.srcc = regs(ops[3].split()[0])
            r = self.ab | self.srcc
        elif self.valu:
            w = regs(ops[0])
            rest = ops[1:]
            if mn.startswith(("v_add_co", "v_sub_co", "v_addc_co", "v_subb_co", "v_subrev_co", "v_mad_u64", "v_div_scale")):
                w |= regs(ops[1]); rest = ops[2:]
            for o in rest: r |= regs(o)
            if mn.startswith(("v_fmac", "v_dot2c", "v_pk_fmac")) or "UNUSED_PRESERVE" in body or self.dpp or mn.startswith("v_writelane"): r |= regs(ops[0])
            if self.perm: w |= regs(ops[1]); r |= regs(ops[0])
            if mn.startswith("v_cmpx"): w.add(("exec", 0))
            if mn.startswith("v_cndmask") and len(ops) == 3: r.add(("vcc", 0))
        elif self.vmem:
            if mn in ("buffer_inv", "buffer_wbl2"): pass
            elif lds:
                for o in ops: r |= regs(o)
                r.add(("m0", 0))
            elif self.store:
                for o in ops: r |= regs(o)
                d = ops[0] if mn.startswith("buffer") else ops[1]
                if "x3" in mn or "x4" in mn: self.sdata = regs(d)
                if "atomic" in mn and "sc0" in body: w = regs(ops[0])
            else:
                w = regs(ops[0])
                for o in ops[1:]: r |= regs(o)
        elif self.ds:
            if mn.startswith(("ds_read", "ds_bpermute", "ds_permute", "ds_swizzle")):
                w = regs(ops[0])
                for o in ops[1:]: r |= regs(o)
            else:
                for o in ops: r |= regs(o)
        elif self.salu:
            if mn.startswith(("s_cmp", "s_waitcnt", "s_nop", "s_barrier", "s_branch", "s_cbranch", "s_endpgm", "s_setprio", "s_sleep")):
                for o in ops: r |= regs(o)
            else:
                if ops: w = regs(ops[0])
                for o in ops[1:]: r |= regs(o)
                if "saveexec" in mn: w.add(("exec", 0))
        self.w, self.r = w, r

def need(p, c):
    n = 0
    pv = {x for x in p.w if x[0] in "va"}
    ps = {x for x in p.w if x[0] in ("s", "vcc")}
    if p.valu:
        if c.mfma and pv & c.r: n = max(n, 3 if p.dot else 2)
        if c.mfma and ("exec", 0) in p.w: n = max(n, 4)
        if p.trans and c.valu and not c.trans and pv & c.r: n = max(n, 1)
        if p.dot and (c.valu or c.vmem or c.ds) and pv & (c.r | c.w):
            same = c.mn == p.mn and len(c.ops) > 3 and not (pv & (regs(c.ops[1]) | regs(c.ops[2])))
            same = same or (c.mn == p.mn and c.mn.startswith("v_dot2c") and not (pv & (regs(c.ops[1]) | regs(c.ops[2]))))
            if not same: n = max(n, 3)
        if c.perm and pv & c.r: n = max(n, 2)
        if c.valu and c.dpp and pv & c.r: n = max(n, 2)
        if c.valu and c.dpp and ("exec", 0) in p.w: n = max(n, 5)
        if c.mn.startswith(("v_readlane", "v_readfirstlane")) and pv & c.r: n = max(n, 1)
        if c.vmem and ps & c.r: n = max(n, 5)
        if c.valu and ps & c.r: n = max(n, 2)
        if c.mn.startswith(("v_readlane", "v_writelane")) and ps & c.r: n = max(n, 4)
        if ("sdwa" in p.mn or "op_sel" in p.line and not p.mn.startswith("v_pk")) and c.valu and pv & (c.r | c.w): n = max(n, 1)
    if p.salu and ("m0", 0) in p.w and (c.ldsdma or "addtid" in c.mn): n = max(n, 1)
    if p.sdata and (p.sdata & c.w): n = max(n, 2 if c.valu else 1)
    if p.mfma:
        ps_ = passes(p.mn)
        tab = {4: (6, 8, 3), 8: (10, 12, 7), 16: (18, 20, 15)}[ps_]
        if c.mfma:
            if p.w & c.ab: n = max(n, tab[1])
            if p.w & c.srcc and not (p.w == c.srcc and passes(c.mn) == ps_): n = max(n, tab[0])
        elif (c.valu or c.vmem or c.ds) and p.w & (c.r | c.w): n = max(n, tab[1])
        if c.valu and p.srcc & c.w: n = max(n, tab[2])
    return n

def check(lines, name=""):
    ins = []; labels = {}
    for l in lines:
        if l.endswith(":"): labels[l[:-1]] = len(ins)
        elif l.startswith(".") or l.startswith(";"): continue
        else: ins.append(I(l))
    bad = 0
    def scan(seq):
        nonlocal bad
        for i, p in enumerate(seq):
            if not (p.valu or p.mfma or p.salu or p.sdata): continue
            d = 0
            for c in seq[i+1:i+24]:
                k = need(p, c)
                if k > d:
                    print(f"HAZARD[{name}] need {k} have {d}:\n   {p.line}\n   {c.line}"); bad += 1
                d += c.states
                if d >= 20: break
    scan(ins)
    for i, p in enumerate(ins):
        if p.mn.startswith(("s_cbranch", "s_branch")) and p.ops[0] in labels:
            t = labels[p.ops[0]]
            seq = ins[max(0, i-22):i+1] + ins[t:t+22]
            n0 = len(ins[max(0, i-22):i+1])
            for a in range(n0):
                d = sum(x.states for x in seq[a+1:n0])
                for c in seq[n0:]:
                    k = need(seq[a], c)
                    if k > d:
                        print(f"HAZARD[{name}] (branch edge) need {k} have {d}:\n   {seq[a].line}\n   {c.line}"); bad += 1
                    d += c.states
    return bad
```

```python
from asm import *
NAME = "adaLN_cond__softmax_full_mha__glu_gated_geglu__prompt"
A_X, A_WQKV, A_WO, A_BX, A_WG, A_WU, A_WD, A_C, A_WMOD, A_OUT, A_DBG, A_WS = [8*i for i in range(12)]
WS_MOD  = 0
WS_UC   = 0x4000
WS_STAT = 0x10000
WS_XH   = 0x80000
WS_Q    = 0x300000
WS_KV   = 0x580000
WS_O    = 0xAC0000
WS_X2   = 0xD40000
WS_Y2   = 0xFC0000
WS_HH   = 0x1240000
WS_TS   = 0x1840000
WS_END  = 0x1900000
KVT = 2688
QT = 1280
LOG2E = 1.4426950408889634
import struct
def f32(x): return "0x%08x" % struct.unpack("<I", struct.pack("<f", x))[0]

def srd(k, d, base, size):
    k(f"s_mov_b32 s{d}, s{base}\ns_mov_b32 s{d+1}, s{base+1}\ns_mov_b32 s{d+2}, {hex(size)}\ns_mov_b32 s{d+3}, 0x20000")

def kernel_text(k, vgpr, sgpr=96, accum=None):
    if accum is None: accum = min(256, (vgpr + 3)//4*4)
    bad = check(k.L, k.name)
    assert bad == 0, f"{bad} hazards in {k.name}"
    code = f""".text
.globl {k.name}_kernel
.p2align 8
.type {k.name}_kernel,@function
{k.name}_kernel:
{k.text()}
"""
    kd = f""".p2align 6
.amdhsa_kernel {k.name}_kernel
  .amdhsa_next_free_vgpr {vgpr}
  .amdhsa_next_free_sgpr {sgpr}
  .amdhsa_accum_offset {accum}
  .amdhsa_group_segment_fixed_size 0
  .amdhsa_kernarg_size 96
  .amdhsa_user_sgpr_count 2
  .amdhsa_user_sgpr_kernarg_segment_ptr 1
  .amdhsa_system_sgpr_workgroup_id_x 1
.end_amdhsa_kernel
"""
    return code, kd

DIAG = False
def stamp(k, i):
    if DIAG: k(f"s_memrealtime s[{80+2*i}:{81+2*i}]")
def stamp_flush(k, kid, n, ws_srd):
    if not DIAG: return
    k(f"s_memrealtime s[{80+2*(n-1)}:{81+2*(n-1)}]")
    k("s_waitcnt lgkmcnt(0)")
    k("s_mov_b64 exec, 1")
    k(f"s_lshl_b32 s94, s2, 3\ns_add_u32 s94, s94, s79\ns_lshl_b32 s94, s94, 5\ns_add_u32 s94, s94, {WS_TS + kid*0x10000}")
    k("v_mov_b32 v1, 0")
    for i in range(n):
        k(f"v_mov_b32 v2, s{80+2*i}\nbuffer_store_dword v2, v1, s[{ws_srd}:{ws_srd+3}], s94 offen offset:{4*i}")
def stamp_init(k):
    if DIAG:
        k("s_memrealtime s[80:81]")
        k("v_lshrrev_b32 v1, 6, v0\ns_nop 0\nv_readfirstlane_b32 s79, v1")
```

```python
from common import *
import common
def dpp_sum16(k, regs_, steps=(8, 4, 2, 1)):
    for st in steps:
        if len(regs_) < 3: k("s_nop 1")
        for r in regs_:
            k(f"v_add_f32_dpp v{r}, v{r}, v{r} row_ror:{st} row_mask:0xf bank_mask:0xf")

def gemv_reduce_rows(k, acc, n):
    pass

def k1():
    k = K("prep")
    Lg, Lend = k.label("gemv"), k.label("end")
    stamp_init(k)
    k(f"""
    s_cmp_ge_u32 s2, 248
    s_cbranch_scc1 {Lend}
    s_load_dwordx2 s[4:5], s[0:1], {A_X}
    s_load_dwordx4 s[8:11], s[0:1], {A_C}
    s_load_dwordx2 s[6:7], s[0:1], {A_WS}
    s_cmp_ge_u32 s2, 128
    s_cbranch_scc1 {Lg}
    """)
    k(f"""
    s_and_b32 s12, s2, 1
    s_lshl_b32 s12, s12, 10
    s_lshr_b32 s13, s2, 1
    s_lshl_b32 s13, s13, 4
    s_add_u32 s12, s12, s13
    v_lshrrev_b32 v1, 4, v0
    v_add_u32 v1, s12, v1              ; row
    v_and_b32 v2, 15, v0               ; li
    v_mul_u32_u24 v3, 1280, v1
    v_lshl_add_u32 v3, v2, 4, v3
    s_waitcnt lgkmcnt(0)
    """)
    srd(k, 16, 4, 2048*1280)
    srd(k, 20, 6, WS_END)
    for i in range(5):
        k(f"buffer_load_dwordx4 v[{8+4*i}:{11+4*i}], v3, s[16:19], 0 offen offset:{256*i}")
    k(f"""
    v_lshrrev_b32 v4, 5, v1
    v_mul_u32_u24 v4, 40, v4
    v_lshrrev_b32 v5, 1, v2
    v_add_u32 v4, v4, v5
    v_lshlrev_b32 v4, 10, v4
    v_and_b32 v5, 1, v2
    v_lshlrev_b32 v5, 5, v5
    v_and_b32 v6, 31, v1
    v_add_u32 v5, v5, v6
    v_lshl_add_u32 v4, v5, 4, v4
    s_mov_b32 s14, 0xffff0000
    """)
    X = 32
    for i in range(5):
        k(f"s_waitcnt vmcnt({4-i})")
        for j in range(4):
            r = 8+4*i+j
            k(f"v_lshlrev_b32 v{X+8*i+2*j}, 16, v{r}\nv_and_b32 v{X+8*i+2*j+1}, s14, v{r}")
    k(f"v_pk_add_f32 v[6:7], v[{X}:{X+1}], v[{X+2}:{X+3}]")
    for j in range(2, 20):
        k(f"v_pk_add_f32 v[6:7], v[6:7], v[{X+2*j}:{X+2*j+1}]")
    k("v_add_f32 v6, v6, v7")
    dpp_sum16(k, [6])
    k(f"v_mul_f32 v6, {f32(-1.0/640)}, v6")
    for j in range(20):
        k(f"v_pk_add_f32 v[{X+2*j}:{X+2*j+1}], v[{X+2*j}:{X+2*j+1}], v[6:7] op_sel_hi:[1,0]")
    k(f"v_pk_mul_f32 v[6:7], v[{X}:{X+1}], v[{X}:{X+1}]")
    for j in range(1, 20):
        k(f"v_pk_fma_f32 v[6:7], v[{X+2*j}:{X+2*j+1}], v[{X+2*j}:{X+2*j+1}], v[6:7]")
    k("v_add_f32 v6, v6, v7")
    dpp_sum16(k, [6])
    k(f"""
    v_mov_b32 v7, {f32(1e-5)}
    v_fmac_f32 v7, {f32(1.0/640)}, v6
    v_rsq_f32 v6, v7
    s_mov_b32 s15, {WS_XH}
    """)
    for i in range(5):
        for j in range(4):
            a = X+8*i+2*j
            k(f"v_pk_mul_f32 v[{a}:{a+1}], v[{a}:{a+1}], v[6:7] op_sel_hi:[1,0]")
        for j in range(4):
            a = X+8*i+2*j
            k(f"v_cvt_pk_bf16_f32 v{8+4*i+j}, v{a}, v{a+1}")
        k(f"buffer_store_dwordx4 v[{8+4*i}:{11+4*i}], v4, s[20:23], s15 offen")
        if i < 4: k("s_add_u32 s15, s15, 8192")
    stamp_flush(k, 0, 2, 20)
    k("s_endpgm")
    k(f"{Lg}:")
    k(f"""
    s_sub_u32 s12, s2, 128
    s_and_b32 s13, s12, 7
    s_mul_i32 s13, s13, 15
    s_lshr_b32 s12, s12, 3
    s_add_u32 s12, s12, s13
    s_lshl_b32 s13, s12, 6
    v_lshrrev_b32 v1, 2, v0
    v_and_b32 v2, 3, v0
    v_mul_u32_u24 v3, 20, v1
    s_mov_b32 s14, 76800
    v_mul_lo_u32 v4, s14, v1
    v_lshl_add_u32 v4, v2, 4, v4
    s_waitcnt lgkmcnt(0)
    """)
    srd(k, 16, 8, 1280)
    srd(k, 24, 10, 640*7680)
    srd(k, 20, 6, WS_END)
    k("buffer_load_dwordx4 v[8:11], v3, s[16:19], 0 offen\nbuffer_load_dword v12, v3, s[16:19], 0 offen offset:16")
    W = 32
    for i in range(10):
        k(f"buffer_load_dwordx4 v[{W+4*i}:{W+3+4*i}], v4, s[24:27], s13 offen")
        if i < 9: k("s_add_u32 s13, s13, 7680")
    k("s_mov_b32 s14, 0xffff0000\ns_waitcnt vmcnt(10)")
    Aa = 16
    for j in range(5):
        k(f"v_lshlrev_b32 v{Aa+2*j}, 16, v{8+j}\nv_and_b32 v{Aa+2*j+1}, s14, v{8+j}")
    for i in range(10):
        k(f"v_mul_f32 v{72+i}, {f32(-LOG2E)}, v{Aa+i}")
    for i in range(10):
        k(f"v_exp_f32 v{72+i}, v{72+i}")
    for i in range(10):
        k(f"v_add_f32 v{72+i}, 1.0, v{72+i}")
    for i in range(10):
        k(f"v_rcp_f32 v{72+i}, v{72+i}")
    for i in range(10):
        k(f"v_mul_f32 v{72+i}, v{72+i}, v{Aa+i}")
    for j in range(5):
        k(f"v_cvt_pk_bf16_f32 v{8+j}, v{72+2*j}, v{73+2*j}")
    for j in range(5):
        k(f"v_lshlrev_b32 v{Aa+2*j}, 16, v{8+j}\nv_and_b32 v{Aa+2*j+1}, s14, v{8+j}")
    ACC = 8
    for i in range(10):
        k(f"s_waitcnt vmcnt({9-i})")
        for j in range(4):
            k(f"v_lshlrev_b32 v{72+2*j}, 16, v{W+4*i+j}\nv_and_b32 v{73+2*j}, s14, v{W+4*i+j}")
        for j in range(8):
            if i == 0: k(f"v_mul_f32 v{ACC+j}, v{72+j}, v{Aa}")
            else: k(f"v_fmac_f32 v{ACC+j}, v{72+j}, v{Aa+i}")
    dpp_sum16(k, list(range(ACC, ACC+8)), steps=(8, 4))
    k(f"""
    v_lshrrev_b32 v1, 4, v0
    v_lshlrev_b32 v1, 7, v1
    v_lshl_add_u32 v1, v2, 5, v1
    ds_write_b128 v1, v[8:11]
    ds_write_b128 v1, v[12:15] offset:16
    v_and_b32 v1, 31, v0
    v_lshlrev_b32 v1, 2, v1
    s_waitcnt lgkmcnt(0)
    s_barrier
    """)
    for i in range(16):
        k(f"ds_read_b32 v{8+i}, v1 offset:{128*i}")
    k(f"""
    s_sub_u32 s13, s12, 20
    s_cmp_lt_u32 s13, 20
    s_cselect_b32 s15, 1.0, 0
    s_sub_u32 s13, s12, 80
    s_cmp_lt_u32 s13, 20
    s_cselect_b32 s15, 1.0, s15
    s_lshl_b32 s12, s12, 7
    s_waitcnt lgkmcnt(0)
    """)
    for i in range(1, 8): k(f"v_pk_add_f32 v[8:9], v[8:9], v[{8+2*i}:{9+2*i}]")
    k(f"""
    v_add_f32 v8, v8, v9
    v_cvt_pk_bf16_f32 v8, v8, v8
    v_and_b32 v8, s14, v8
    v_add_f32 v8, s15, v8
    v_cvt_pk_bf16_f32 v8, v8, v8
    v_and_b32 v8, s14, v8
    v_cmp_gt_u32 vcc, 32, v0
    s_and_saveexec_b64 s[28:29], vcc
    s_cbranch_execz {Lend}
    buffer_store_dword v8, v1, s[20:23], s12 offen offset:{WS_MOD}
    """)
    stamp_flush(k, 0, 2, 20)
    k(f"{Lend}:\ns_endpgm")
    return k, dict(grid=248, block=256, lds=2048, vgpr=88)
```

```python
from common import *
from k1 import dpp_sum16

def interleave(mfmas, fillers):
    out = []
    n = len(mfmas); done = 0
    for j, (pre, m, post) in enumerate(mfmas):
        out += pre + [m] + post
        upto = (j+1)*len(fillers)//n
        out += fillers[done:upto]; done = upto
    return out

def k2():
    k = K("qkv")
    Lh, Lend, Lv = k.label("helper"), k.label("end"), k.label("vtype")
    ACC, BF, AR, AT, SB, TMP = 16, 96, 116, 196, 204, 236
    VDMA, VTR, VTR2, VSB, VA = 1, 6, 11, 244, 245
    SLOT = 20480; TAB = 5*SLOT
    stamp_init(k)
    k(f"""
    s_cmp_ge_u32 s2, 240
    s_cbranch_scc1 {Lend}
    s_load_dwordx2 s[4:5], s[0:1], {A_WQKV}
    s_load_dwordx2 s[6:7], s[0:1], {A_WS}
    s_load_dwordx4 s[8:11], s[0:1], {A_WG}
    s_and_b32 s12, s2, 7               ; xcd
    s_lshr_b32 s13, s2, 3              ; i
    s_cmp_ge_u32 s13, 24
    s_cbranch_scc1 {Lh}
    s_mul_i32 s14, s13, 43
    s_lshr_b32 s14, s14, 7             ; mloc = i/3
    s_mul_i32 s15, s14, 3
    s_sub_u32 s15, s13, s15            ; type 0=Q 1=K 2=V
    s_and_b32 s28, s12, 1
    s_lshl_b32 s28, s28, 3
    s_add_u32 s14, s14, s28            ; mblk
    s_lshr_b32 s12, s12, 1
    v_lshrrev_b32 v16, 6, v0
    v_and_b32 v17, 63, v0              ; lane
    v_readfirstlane_b32 s29, v16       ; wave
    s_mul_i32 s30, s15, 1280
    s_mul_i32 s31, s12, 320
    s_add_u32 s30, s30, s31
    s_lshl_b32 s14, s14, 2
    s_add_u32 s14, s14, s29
    """)
    k(f"""
    v_lshrrev_b32 v18, 4, v17
    v_bfe_u32 v19, v17, 2, 2
    v_and_b32 v20, 3, v17
    v_lshl_add_u32 v21, v16, 4, v19    ; 16w + row
    """)
    for i in range(5):
        k(f"""
        v_add_u32 v22, {4*i}, v18
        v_mul_u32_u24 v23, 13, v22
        v_lshrrev_b32 v23, 6, v23          ; /5
        v_mul_u32_u24 v24, 5, v23
        v_sub_u32 v22, v22, v24            ; cb
        v_lshl_add_u32 v23, v23, 2, v21
        v_mul_u32_u24 v23, 3840, v23
        v_lshl_add_u32 v23, v22, 6, v23
        v_lshl_add_u32 v{VDMA+i}, v20, 4, v23
        """)
    k(f"""
    v_and_b32 v22, 0x33, v17
    v_bfe_u32 v23, v17, 2, 1
    v_lshl_or_b32 v22, v23, 3, v22
    v_bfe_u32 v23, v17, 3, 1
    v_lshl_or_b32 v22, v23, 2, v22
    s_cmp_eq_u32 s15, 2
    s_cselect_b64 vcc, -1, 0
    v_cndmask_b32 v22, v17, v22, vcc
    v_lshlrev_b32 v{VA}, 4, v22
    v_lshlrev_b32 v25, 4, v0
    s_mul_i32 s31, s14, 40960
    s_add_u32 s31, s31, {WS_XH}
    s_waitcnt lgkmcnt(0)
    """)
    srd(k, 16, 4, 640*3840)
    srd(k, 20, 6, WS_END)
    k(f"""
    s_add_u32 s24, s6, s31
    s_addc_u32 s25, s7, 0
    s_mov_b32 s26, 40960
    s_mov_b32 s27, 0x20000
    buffer_load_dwordx4 v[28:31], v25, s[20:23], 0 offen offset:{WS_MOD}
    buffer_load_dwordx4 v[32:35], v25, s[20:23], 0 offen offset:{WS_MOD+2560}
    s_mul_i32 s32, s29, 5120
    s_mov_b32 s33, 0                   ; A offset
    """)
    def group(c):
        g = []
        for i in range(5):
            g.append([f"s_add_u32 m0, s32, {(c % 5)*SLOT + 1024*i}", "s_nop 0" if False else None,
                      f"buffer_load_dwordx4 v{VDMA+i}, s[16:19], s30 offen lds"])
        for i in range(4):
            r = AR + 16*(c % 5) + 4*i
            g.append([f"buffer_load_dwordx4 v[{r}:{r+3}], v{VA}, s[24:27], s33 offen offset:{1024*i}"])
        g.append([f"s_add_u32 s30, s30, {64*3840}", "s_add_u32 s33, s33, 4096"])
        return [[x for x in b if x] for b in g]
    for c in range(4):
        for b in (group(c) if c < 3 else group(c)[:3]):
            if len(b) == 2 and "m0" in b[0]: k(b[0]); k("s_nop 0"); k(b[1])
            else:
                for x in b: k(x)
    k(f"""
    v_and_b32 v22, 1, v18              ; G&1
    v_lshrrev_b32 v23, 5, v17          ; hh
    v_mul_u32_u24 v24, 2560, v23
    v_lshl_add_u32 v24, v19, 6, v24    ; hh*2560 + r*64
    v_lshl_add_u32 v26, v22, 2, v20    ; 4(G&1)+c
    v_and_b32 v27, 1, v20
    v_lshrrev_b32 v36, 1, v20
    v_lshl_add_u32 v27, v27, 1, v36    ; 2(c&1)+(c>>1)
    v_mul_u32_u24 v36, 20, v22
    v_add_u32 v27, v27, v36
    v_mul_u32_u24 v36, 5, v26
    v_add_u32 v36, 4, v36
    v_lshlrev_b32 v{VSB}, 6, v23
    v_add_u32 v{VSB}, {TAB}, v{VSB}
    """)
    for t in range(5):
        if t < 4: k(f"v_add_u32 v37, {5*t}, v27")
        else: k("v_mov_b32 v37, v36")
        k(f"""
        v_add_u32 v38, {8*t}, v26
        v_cndmask_b32 v37, v37, v38, vcc
        v_lshrrev_b32 v38, 3, v37
        v_and_b32 v37, 7, v37
        v_lshl_add_u32 v38, v38, 8, v24
        v_lshl_add_u32 v{VTR+t}, v37, 3, v38
        v_add_u32 v{VTR2+t}, {3*SLOT}, v{VTR+t}
        """)
    k(f"""
    v_lshrrev_b32 v22, 1, v0
    v_and_b32 v23, 1, v0
    v_lshlrev_b32 v22, 6, v22
    v_lshl_add_u32 v22, v23, 4, v22
    v_add_u32 v22, {TAB}, v22
    v_cmp_gt_u32 vcc, 160, v0
    s_waitcnt vmcnt(30)
    v_lshrrev_b32 v32, 16, v32
    v_lshrrev_b32 v34, 16, v34
    s_and_saveexec_b64 s[34:35], vcc
    ds_write_b128 v22, v[32:35]
    ds_write_b128 v22, v[28:31] offset:32
    s_mov_b64 exec, s[34:35]
    """)
    for i in range(80): k(f"v_mov_b32 v{ACC+i}, 0")
    k("s_waitcnt vmcnt(21) lgkmcnt(0)\ns_barrier")
    stamp(k, 1)
    def trreads(s, t):
        c = (s//4) % 5; sl = s % 4
        base, off = (VTR+t, c*SLOT) if c < 3 else (VTR2+t, (c-3)*SLOT)
        return [f"ds_read_b64_tr_b16 v[{BF+4*t+2*jj}:{BF+4*t+2*jj+1}], v{base} offset:{off + (4*sl+jj)*1280}" for jj in range(2)]
    def sbreads(s, sref):
        b = SB + 16*(s & 1)
        return [f"ds_read_b128 v[{b+4*j}:{b+4*j+3}], v{VSB} offset:{sref*128 + 16*j}" for j in range(4)]
    def transform(s):
        b = SB + 16*(s & 1); a = AR + 4*(s % 20); o = AT + 4*(s & 1)
        L = [f"v_dot2_f32_bf16 v{TMP+j}, v{a+j//2}, v{b+j}, v{b+8+j}" for j in range(8)]
        L += [f"v_cvt_pk_bf16_f32 v{o+j}, v{TMP+2*j}, v{TMP+2*j+1}" for j in range(4)]
        return L
    for x in sbreads(0, 0): k(x)
    for t in range(5):
        for x in trreads(0, t) + sbreads(1, 1)[t:t+1]: k(x)
    k("s_waitcnt lgkmcnt(14)")
    tr0 = transform(0)
    for x in tr0[:8]: k(x)
    k("s_nop 0")
    for x in tr0[8:]: k(x)
    k("s_mov_b32 s36, 0")
    k(f"s_cmp_eq_u32 s15, 2\ns_cbranch_scc1 {Lv}")
    def mainloop(vtype):
        Ll = k.label("loop")
        k(".p2align 3")
        k(f"{Ll}:")
        pend = group(3)[3:]
        for s in range(20):
            if s % 4 == 3:
                k("s_waitcnt vmcnt(18)\ns_barrier")
                pend = group(s//4 + 4)
            sb = sbreads(s+2, s+2); tf = transform(s+1)
            ms = []
            for t in range(5):
                d = vr(ACC+16*t, 16); w = vr(BF+4*t, 4); x = vr(AT+4*(s & 1), 4)
                m = f"v_mfma_f32_32x32x16_bf16 {d}, {x}, {w}, {d}" if vtype else f"v_mfma_f32_32x32x16_bf16 {d}, {w}, {x}, {d}"
                pre = {0: ["s_waitcnt lgkmcnt(9)"], 2: ["s_waitcnt lgkmcnt(8)"], 4: ["s_waitcnt lgkmcnt(12)"]}.get(t, [])
                post = trreads(s+1, t) + ([sb[t]] if t < 4 else [])
                ms.append((pre, m, post))
            nv = {3: 3, 0: 3, 1: 3, 2: 1}[s % 4]
            vm = pend[:nv]; pend = pend[nv:]
            out = []
            for t, (pre, m, post) in enumerate(ms):
                b = vm[t] if t < len(vm) else []
                if t == 4: post = tf[9:12] + post
                if len(b) == 2 and "m0" in b[0]: out += pre + [b[0], m, b[1]] + post
                else: out += pre + [m] + b + post
                if t == 2: out += tf[0:5]
                if t == 3: out += tf[5:9]
            for x in out: k(x)
        k(f"""
        v_add_u32 v{VSB}, {20*128}, v{VSB}
        s_add_u32 s36, s36, 1
        s_cmp_lt_u32 s36, 2
        s_cbranch_scc1 {Ll}
        """)
    mainloop(False)
    stamp(k, 2)
    k(f"""
    s_mov_b32 s38, {KVT}
    s_mov_b32 s39, {WS_KV}
    s_cmp_eq_u32 s15, 0
    s_cselect_b32 s38, {QT}, s38
    s_cselect_b32 s39, {WS_Q}, s39
    s_cselect_b32 s40, {f32(20**-0.5*LOG2E)}, 1.0
    s_mov_b32 s41, s40
    s_lshl_b32 s37, s38, 6
    s_mul_i32 s38, s38, s14
    s_add_u32 s39, s39, s38
    s_lshl_b32 s38, s12, 3
    s_mul_i32 s38, s38, s37
    s_add_u32 s39, s39, s38
    v_and_b32 v1, 63, v0
    v_lshrrev_b32 v2, 5, v1
    v_mul_lo_u32 v2, s37, v2
    v_and_b32 v3, 31, v1
    v_lshl_add_u32 v2, v3, 3, v2
    v_lshlrev_b32 v1, 4, v1
    s_lshl_b32 s43, s37, 2
    """)
    for t in range(4):
        for u in range(2):
            a = ACC + 16*t + 8*u; o = BF + 4*((2*t+u) % 5)
            for j in range(4): k(f"v_pk_mul_f32 v[{a+2*j}:{a+2*j+1}], v[{a+2*j}:{a+2*j+1}], s[40:41]")
            if u == 0: k(f"s_mul_i32 s42, s37, {t}\ns_add_u32 s42, s42, s39")
            else: k("s_add_u32 s42, s42, s43")
            if t == 0 and u == 0: k("s_waitcnt lgkmcnt(0)")
            for j in range(4): k(f"v_cvt_pk_bf16_f32 v{o+j}, v{a+2*j}, v{a+2*j+1}")
            k(f"buffer_store_dwordx4 v[{o}:{o+3}], v1, s[20:23], s42 offen")
    for g in range(4):
        a = ACC + 64 + 4*g
        for j in range(2): k(f"v_pk_mul_f32 v[{a+2*j}:{a+2*j+1}], v[{a+2*j}:{a+2*j+1}], s[40:41]")
        k(f"s_mul_i32 s42, s37, {2*g}\ns_add_u32 s42, s42, s39")
        for j in range(2): k(f"v_cvt_pk_bf16_f32 v{a+j}, v{a+2*j}, v{a+2*j+1}")
        k(f"buffer_store_dwordx2 v[{a}:{a+1}], v2, s[20:23], s42 offen offset:1024")
    stamp_flush(k, 1, 4, 20)
    k("s_endpgm")
    k(f"{Lv}:")
    mainloop(True)
    stamp(k, 2)
    k(f"""
    s_mul_i32 s38, s14, {KVT}
    s_mul_i32 s39, s12, {8*64*KVT}
    s_add_u32 s39, s39, s38
    s_add_u32 s39, s39, {WS_KV + 1280}
    s_mov_b32 s37, {64*KVT}
    v_and_b32 v1, 31, v0
    v_bfe_u32 v2, v0, 5, 1
    v_mul_u32_u24 v2, 336, v2
    v_lshrrev_b32 v3, 2, v1
    v_mul_lo_u32 v3, s37, v3
    v_and_b32 v4, 3, v1
    v_mul_u32_u24 v4, 336, v4
    v_add_u32 v3, v3, v4
    v_mov_b32 v8, 0x3f803f80
    v_mov_b32 v9, 0x3f803f80
    v_mov_b32 v10, 0x3f803f80
    v_mov_b32 v11, 0x3f803f80
    buffer_store_dwordx4 v[8:11], v3, s[20:23], s39 offen offset:320
    s_waitcnt lgkmcnt(0)
    """)
    for t in range(5):
        k(f"""
        v_add_u32 v4, {32*t}, v1
        v_mul_u32_u24 v5, 205, v4
        v_lshrrev_b32 v5, 12, v5           ; /20
        v_mul_u32_u24 v6, 20, v5
        v_sub_u32 v4, v4, v6
        v_mul_lo_u32 v5, s37, v5
        v_lshl_add_u32 v4, v4, 4, v2
        v_add_u32 v4, v4, v5
        """)
        for u in range(2):
            a = ACC + 16*t + 8*u; o = BF + 4*((2*t+u) % 5)
            for j in range(4): k(f"v_cvt_pk_bf16_f32 v{o+j}, v{a+2*j}, v{a+2*j+1}")
            k(f"buffer_store_dwordx4 v[{o}:{o+3}], v4, s[20:23], s39 offen offset:{672*u}")
    stamp_flush(k, 1, 4, 20)
    k("s_endpgm")
    k(f"{Lh}:")
    k(f"""
    s_sub_u32 s13, s13, 24
    s_lshr_b32 s14, s12, 1
    s_mul_i32 s14, s14, 6
    s_add_u32 s13, s13, s14            ; 0..23
    s_and_b32 s12, s12, 1
    s_mul_i32 s12, s12, 12
    s_cmp_ge_u32 s13, 12
    s_cselect_b32 s14, 12, 0
    s_cselect_b32 s15, {2*1536*4}, 0
    s_waitcnt lgkmcnt(0)
    s_cselect_b32 s8, s10, s8
    s_cselect_b32 s9, s11, s9
    s_sub_u32 s13, s13, s14
    s_add_u32 s13, s13, s12
    s_lshl_b32 s28, s13, 7
    v_lshrrev_b32 v1, 3, v0
    v_and_b32 v2, 7, v0
    v_mul_u32_u24 v3, 80, v1
    s_mov_b32 s14, {20*3072}
    v_mul_lo_u32 v4, s14, v1
    v_lshl_add_u32 v4, v2, 4, v4
    """)
    srd(k, 16, 8, 640*3072)
    srd(k, 20, 6, WS_END)
    k(f"s_mov_b32 s29, {WS_MOD + 3*2560}")
    Bv, Sv, W = 16, 36, 56
    for j in range(5):
        k(f"buffer_load_dwordx4 v[{Bv+4*j}:{Bv+4*j+3}], v3, s[20:23], s29 offen offset:{16*j}")
        k(f"buffer_load_dwordx4 v[{Sv+4*j}:{Sv+4*j+3}], v3, s[20:23], s29 offen offset:{2560+16*j}")
    for i in range(20):
        k(f"buffer_load_dwordx4 v[{W+4*i}:{W+3+4*i}], v4, s[16:19], s28 offen")
        if i < 19: k("s_add_u32 s28, s28, 3072")
    k("s_mov_b32 s14, 0xffff0000")
    U, C, T = 136, 144, 152
    for i in range(20):
        k(f"s_waitcnt vmcnt({19-i})")
        for j in range(4):
            k(f"v_lshlrev_b32 v{T+2*j}, 16, v{W+4*i+j}\nv_and_b32 v{T+1+2*j}, s14, v{W+4*i+j}")
        e = i & 1; rs = Sv + i - e; rb = Bv + i - e
        for j in range(4):
            for (acc, src) in ((U, rs), (C, rb)):
                if i == 0: k(f"v_pk_mul_f32 v[{acc+2*j}:{acc+2*j+1}], v[{T+2*j}:{T+2*j+1}], v[{src}:{src+1}] op_sel:[0,{e}] op_sel_hi:[1,{e}]")
                else: k(f"v_pk_fma_f32 v[{acc+2*j}:{acc+2*j+1}], v[{T+2*j}:{T+2*j+1}], v[{src}:{src+1}], v[{acc+2*j}:{acc+2*j+1}] op_sel:[0,{e},0] op_sel_hi:[1,{e},1]")
    dpp_sum16(k, list(range(U, U+16)), steps=(8,))
    k(f"""
    v_lshrrev_b32 v1, 4, v0
    v_lshlrev_b32 v1, 9, v1
    v_lshl_add_u32 v1, v2, 5, v1
    ds_write_b128 v1, v[{U}:{U+3}]
    ds_write_b128 v1, v[{U+4}:{U+7}] offset:16
    ds_write_b128 v1, v[{C}:{C+3}] offset:256
    ds_write_b128 v1, v[{C+4}:{C+7}] offset:272
    v_and_b32 v1, 127, v0
    v_lshlrev_b32 v1, 2, v1
    s_waitcnt lgkmcnt(0)
    s_barrier
    """)
    for i in range(16): k(f"ds_read_b32 v{8+i}, v1 offset:{512*i}")
    k(f"""
    v_bfe_u32 v2, v0, 6, 1
    v_mul_u32_u24 v2, {1536*4 - 256}, v2
    v_add_u32 v1, v1, v2
    s_lshl_b32 s13, s13, 8
    s_add_u32 s13, s13, s15
    s_add_u32 s13, s13, {WS_UC}
    s_waitcnt lgkmcnt(0)
    """)
    for i in range(1, 8): k(f"v_pk_add_f32 v[8:9], v[8:9], v[{8+2*i}:{9+2*i}]")
    k(f"""
    v_add_f32 v8, v8, v9
    buffer_store_dword v8, v1, s[20:23], s13 offen
    """)
    stamp(k, 1); stamp(k, 2)
    stamp_flush(k, 1, 4, 20)
    k(f"{Lend}:\ns_endpgm")
    return k, dict(grid=240, block=256, lds=5*20480+5120+512, vgpr=248)
```

```python
import sys, importlib
import common
from common import *
def build(kernels, path):
    head = open("cdna_kernels/" + NAME + ".s.ref").read().split("; Override launch")[0]
    launches, codes, kds = [], [], []
    for fn in kernels:
        k, cfg = fn()
        code, kd = kernel_text(k, cfg["vgpr"], cfg.get("sgpr", 96), cfg.get("accum"))
        launches.append(f"; @launch kernel={k.name}_kernel grid=({cfg['grid']},1,1) block=({cfg['block']},1,1) lds={cfg['lds']}")
        codes.append(code); kds.append(kd)
    txt = head + "\n".join(launches) + '\n.amdgcn_target "amdgcn-amd-amdhsa--gfx950"\n' + "".join(codes) + '.section .rodata,"a"\n' + "".join(kds)
    open(path, "w").write(txt)
if __name__ == "__main__":
    out = sys.argv[1]
    if "diag" in sys.argv[2:]: common.DIAG = True
    from k1 import k1
    from k2 import k2
    ks = [k1, k2]
    for m in ("k3", "k4", "k5", "k6"):
        try: ks.append(getattr(importlib.import_module(m), m))
        except ModuleNotFoundError: pass
    build(ks, out)
```

```python
from asm import *
NAME = "adaLN_cond__softmax_full_mha__glu_gated_geglu__prompt"
A_X, A_WQKV, A_WO, A_BX, A_WG, A_WU, A_WD, A_C, A_WMOD, A_OUT, A_DBG, A_WS = [8*i for i in range(12)]
WS_MOD  = 0
WS_UC   = 0x4000
WS_STAT = 0x10000
WS_XH   = 0x80000
WS_Q    = 0x300000
WS_KV   = 0x580000
WS_O    = 0xAC0000
WS_X2   = 0xD40000
WS_Y2   = 0xFC0000
WS_HH   = 0x1240000
WS_TS   = 0x1840000
WS_END  = 0x1900000
KVT = 2688
QT = 1280
LOG2E = 1.4426950408889634
import struct
def f32(x): return "0x%08x" % struct.unpack("<I", struct.pack("<f", x))[0]

def srd(k, d, base, size):
    k(f"s_mov_b32 s{d}, s{base}\ns_mov_b32 s{d+1}, s{base+1}\ns_mov_b32 s{d+2}, {hex(size)}\ns_mov_b32 s{d+3}, 0x20000")

def kernel_text(k, vgpr, sgpr=96, accum=None):
    if accum is None: accum = min(256, (vgpr + 3)//4*4)
    bad = check(k.L, k.name)
    assert bad == 0, f"{bad} hazards in {k.name}"
    code = f""".text
.globl {k.name}_kernel
.p2align 8
.type {k.name}_kernel,@function
{k.name}_kernel:
{k.text()}
"""
    kd = f""".p2align 6
.amdhsa_kernel {k.name}_kernel
  .amdhsa_next_free_vgpr {vgpr}
  .amdhsa_next_free_sgpr {sgpr}
  .amdhsa_accum_offset {accum}
  .amdhsa_group_segment_fixed_size 0
  .amdhsa_kernarg_size 96
  .amdhsa_user_sgpr_count 2
  .amdhsa_user_sgpr_kernarg_segment_ptr 1
  .amdhsa_system_sgpr_workgroup_id_x 1
.end_amdhsa_kernel
"""
    return code, kd

DIAG = False
def stamp(k, i):
    if DIAG: k(f"s_memrealtime s[{80+2*i}:{81+2*i}]\ns_memtime s[{64+2*i}:{65+2*i}]")
def stamp_flush(k, kid, n, ws_srd):
    if not DIAG: return
    k(f"s_memrealtime s[{80+2*(n-1)}:{81+2*(n-1)}]\ns_memtime s[{64+2*(n-1)}:{65+2*(n-1)}]")
    k("s_waitcnt lgkmcnt(0)")
    k("s_mov_b64 exec, 1")
    k(f"s_lshl_b32 s94, s2, 3\ns_add_u32 s94, s94, s79\ns_lshl_b32 s94, s94, 5\ns_add_u32 s94, s94, {WS_TS + kid*0x10000}")
    k("v_mov_b32 v1, 0")
    for i in range(n):
        k(f"v_mov_b32 v2, s{80+2*i}\nbuffer_store_dword v2, v1, s[{ws_srd}:{ws_srd+3}], s94 offen offset:{4*i}")
        k(f"v_mov_b32 v2, s{64+2*i}\nbuffer_store_dword v2, v1, s[{ws_srd}:{ws_srd+3}], s94 offen offset:{16+4*i}")
def stamp_init(k):
    if DIAG:
        k("s_memrealtime s[80:81]\ns_memtime s[64:65]")
        k("v_lshrrev_b32 v1, 6, v0\ns_nop 0\nv_readfirstlane_b32 s79, v1")
```

```python
from common import *

def k3():
    k = K("attn")
    Lend, Lloop, Lout, Lfb, Lfin = [k.label(x) for x in ("end", "loop", "out", "fb", "fin")]
    S = [16, 32, 48]; O = 64; Q1 = 80; Q2 = 84; K1 = 88; K2 = 86; V0 = 92; V1 = 96
    VD, VK1, IDX, VK2, VV = 1, 2, 3, 4, 5
    CH = 8*KVT
    stamp_init(k)
    k(f"""
    s_cmp_ge_u32 s2, 256
    s_cbranch_scc1 {Lend}
    s_load_dwordx2 s[6:7], s[0:1], {A_WS}
    s_and_b32 s12, s2, 7
    s_lshl_b32 s12, s12, 2
    s_bfe_u32 s13, s2, 0x20003
    s_add_u32 s12, s12, s13            ; head
    s_lshr_b32 s13, s2, 5              ; q block
    v_lshrrev_b32 v6, 6, v0
    v_and_b32 v7, 63, v0               ; lane
    v_readfirstlane_b32 s14, v6        ; wave
    v_lshlrev_b32 v{VK1}, 4, v7
    s_lshl_b32 s13, s13, 3
    s_add_u32 s13, s13, s14
    s_mul_i32 s15, s14, 3072
    s_cmp_eq_u32 s14, 7
    s_cselect_b32 s28, {3*CH}, s15
    s_cselect_b32 s31, 0, {CH}
    s_cselect_b32 s15, 0x40000000, s15
    s_add_u32 s29, s28, s31
    s_add_u32 s30, s29, s31
    v_add_u32 v{VD}, s15, v{VK1}
    s_mul_i32 s32, s12, {64*KVT}
    s_add_u32 s32, s32, {WS_KV}
    s_mul_i32 s33, s12, {64*QT}
    s_mul_i32 s34, s13, {QT}
    s_add_u32 s33, s33, s34
    s_add_u32 s33, s33, {WS_Q}
    v_and_b32 v8, 31, v7
    v_lshlrev_b32 v9, 3, v8
    s_mov_b32 m0, s28
    s_mov_b32 s35, 0
    s_waitcnt lgkmcnt(0)
    s_add_u32 s16, s6, s32
    s_addc_u32 s17, s7, 0
    s_mov_b32 s18, {64*KVT}
    s_mov_b32 s19, 0x20000
    """)
    srd(k, 20, 6, WS_END)
    def dma():
        return [f"buffer_load_dwordx4 v{VD}, s[16:19], s35 offen offset:{1024*i} lds" for i in range(3)] + [f"s_add_u32 s35, s35, {CH}"]
    k(f"""
    buffer_load_dwordx4 v[{Q1}:{Q1+3}], v{VK1}, s[20:23], s33 offen
    buffer_load_dwordx2 v[{Q2}:{Q2+1}], v9, s[20:23], s33 offen offset:1024
    """)
    for x in dma(): k(x)
    k("s_mov_b32 m0, s29\ns_nop 0")
    for x in dma(): k(x)
    k(f"""
    v_cmp_lt_u32 s[36:37], 31, v7
    v_add_u32 v9, 1024, v9
    v_mov_b32 v10, {1280+320}
    v_cndmask_b32 v{VK2}, v9, v10, s[36:37]
    v_min_u32 v9, 20, v8
    v_cmp_lt_u32 vcc, 27, v8
    v_mov_b32 v{IDX}, 0xdddd
    v_lshrrev_b32 v10, 5, v7
    v_cndmask_b32_e64 v9, v9, 4, vcc
    v_mul_u32_u24 v10, 336, v10
    v_lshl_add_u32 v{VV}, v9, 4, v10
    """)
    for i in range(16): k(f"v_mov_b32 v{O+i}, 0")
    for i in range(8): k(f"v_mov_b32 v{S[2]+8+i}, 0")
    for i in range(4): k(f"v_mov_b32 v{V1+i}, 0")
    def off(t): return ((t//8) % 3)*CH + (t % 8)*KVT
    rK1 = lambda t, d=K1: f"ds_read_b128 v[{d}:{d+3}], v{VK1} offset:{off(t)}"
    rK2 = lambda t, d=K2: f"ds_read_b64 v[{d}:{d+1}], v{VK2} offset:{off(t)}"
    rV = lambda t, u: f"ds_read_b128 v[{(V0, V1)[u]}:{(V0, V1)[u]+3}], v{VV} offset:{off(t)+1280+672*u}"
    qa = lambda n, a=K1: f"v_mfma_f32_32x32x16_bf16 v[{n}:{n+15}], v[{a}:{a+3}], v[{Q1}:{Q1+3}], 0"
    qb = lambda n, a=K2: f"v_mfma_f32_32x32x8_bf16 v[{n}:{n+15}], v[{a}:{a+1}], v[{Q2}:{Q2+1}], v[{n}:{n+15}]"
    pv = lambda a, b: f"v_smfmac_f32_32x32x32_bf16 v[{O}:{O+15}], v[{a}:{a+3}], v[{b}:{b+7}], v{IDX}"
    def rowmax(c, dst, first):
        L = []
        if first:
            L.append(f"v_max3_f32 v{dst}, v{c}, v{c+1}, v{c+2}")
            for i in range(3, 15, 2): L.append(f"v_max3_f32 v{dst}, v{dst}, v{c+i}, v{c+i+1}")
            L.append(f"v_max_f32 v{dst}, v{dst}, v{c+15}")
        else:
            for i in range(0, 16, 2): L.append(f"v_max3_f32 v{dst}, v{dst}, v{c+i}, v{c+i+1}")
        return L
    def set_m(m):
        k(f"""
        v_mov_b32 v11, v{m}
        s_nop 1
        v_permlane32_swap_b32 v11, v{m}
        s_mov_b32 s38, 0xffff0000
        v_max_f32 v{m}, v11, v{m}
        v_sub_f32 v11, 0, v{m}
        v_and_b32 v12, s38, v11
        v_sub_f32 v11, v11, v12
        v_and_b32 v13, s38, v11
        v_sub_f32 v11, v11, v13
        v_lshrrev_b32 v12, 16, v12
        v_or_b32 v12, v12, v13
        v_lshrrev_b32 v11, 16, v11
        v_cndmask_b32 v{Q2}, v{Q2}, v12, s[36:37]
        v_cndmask_b32 v{Q2+1}, v{Q2+1}, v11, s[36:37]
        """)
    k("s_waitcnt vmcnt(3)")
    k(f"v_cndmask_b32_e64 v{Q2}, v{Q2}, 0, s[36:37]\nv_cndmask_b32_e64 v{Q2+1}, v{Q2+1}, 0, s[36:37]")
    k("s_barrier")
    stamp(k, 1)
    T1, T2 = 100, 104
    k(rK1(0)); k(rK2(0)); k(rK1(1, T1)); k(rK2(1, T2))
    k("s_waitcnt lgkmcnt(2)")
    k(qa(S[0])); k(qb(S[0]))
    k("s_waitcnt lgkmcnt(0)")
    k(qa(S[1], T1))
    k("s_nop 9")
    for x in rowmax(S[0], 10, True): k(x)
    k(qa(S[0]))
    k(rK1(2))
    set_m(10)
    k("s_nop 1")
    k(qb(S[0])); k(rV(0, 0)); k(rK2(2)); k(qb(S[1], T2))
    k("s_mov_b32 s39, 0\ns_nop 7")
    k(".p2align 3")
    k(f"{Lloop}:")
    for t in range(24):
        c = S[t % 3]; p = S[(t-1) % 3]; n = S[(t+2) % 3]
        e = lambda i: k(f"v_exp_f32 v{c+i}, v{c+i}")
        if t == 16:
            k(f"s_cmp_eq_u32 s39, 2\ns_cbranch_scc1 {Lout}")
        d = []
        if t % 8 == 5:
            k(f"s_waitcnt vmcnt(0)\ns_barrier\ns_mov_b32 m0, s{28 + (t//8 + 2) % 3}")
            d = dma()
        e(0); k("s_waitcnt lgkmcnt(3)"); e(1)
        k(pv(V1, p+8)); k(rV(t, 1))
        e(2); e(3)
        for x in d[:1]: k(x)
        e(4); k("s_waitcnt lgkmcnt(3)"); e(5)
        k(qa(n)); k(rK1(t+3))
        e(6); e(7)
        for x in d[1:2]: k(x)
        e(8); k("s_waitcnt lgkmcnt(3)"); e(9)
        k(pv(V0, c)); k(rV(t+1, 0))
        e(10); e(11)
        for x in d[2:]: k(x)
        e(12); k("s_waitcnt lgkmcnt(3)"); e(13)
        k(qb(n)); k(rK2(t+3))
        e(14); e(15)
    k(f"s_add_u32 s39, s39, 1\ns_branch {Lloop}")
    k(f"{Lout}:")
    k("s_waitcnt lgkmcnt(3)")
    k(pv(V1, S[0]+8))
    stamp(k, 2)
    k(f"""
    s_lshr_b32 s40, s12, 2
    s_mul_i32 s40, s40, 5
    s_mul_i32 s41, s13, 40
    s_add_u32 s40, s40, s41
    s_lshl_b32 s40, s40, 10
    s_add_u32 s40, s40, {WS_O}
    s_and_b32 s41, s12, 3
    s_lshl_b32 s42, s41, 10
    s_add_u32 s42, s42, s40
    s_lshr_b32 s43, s41, 1
    s_lshl_b32 s43, s43, 9
    s_and_b32 s41, s41, 1
    s_lshl_b32 s41, s41, 3
    s_add_u32 s43, s43, s41
    s_add_u32 s43, s43, s40
    s_add_u32 s43, s43, 4096
    """)
    k(f"v_mov_b32 v10, v{O+8}\nv_mov_b32 v11, v{O+8}\nv_mul_f32 v12, 0, v{O}")
    for i in range(1, 12): k(f"v_fma_f32 v12, v{O+i}, 0, v12")
    k(f"""
    v_permlane32_swap_b32 v10, v11
    v_add_f32 v12, v12, v11
    v_cmp_ngt_f32 vcc, {f32(2.0**120)}, v12
    s_cbranch_vccnz {Lfb}
    {Lfin}:
    v_rcp_f32 v10, v11
    s_nop 0
    """)
    for j in range(6): k(f"v_pk_mul_f32 v[{O+2*j}:{O+2*j+1}], v[{O+2*j}:{O+2*j+1}], v[10:11] op_sel_hi:[1,0]")
    for j in range(6): k(f"v_cvt_pk_bf16_f32 v{16+j}, v{O+2*j}, v{O+2*j+1}")
    k(f"""
    buffer_store_dwordx4 v[16:19], v{VK1}, s[20:23], s42 offen
    s_mov_b32 exec_hi, 0
    buffer_store_dwordx2 v[20:21], v{VK1}, s[20:23], s43 offen
    """)
    stamp_flush(k, 2, 4, 20)
    k(f"{Lend}:\ns_endpgm")
    L1, L2 = k.label("p1"), k.label("p2")
    c = S[0]
    k(f"""
    {Lfb}:
    s_waitcnt lgkmcnt(0)
    v_cndmask_b32_e64 v{Q2}, v{Q2}, 0, s[36:37]
    v_cndmask_b32_e64 v{Q2+1}, v{Q2+1}, 0, s[36:37]
    v_mov_b32 v10, 0xff800000
    s_mov_b32 s46, 0
    {L1}:
    buffer_load_dwordx4 v[{K1}:{K1+3}], v{VK1}, s[16:19], s46 offen
    buffer_load_dwordx2 v[{K2}:{K2+1}], v{VK2}, s[16:19], s46 offen
    s_waitcnt vmcnt(0)
    {qa(c)}
    {qb(c)}
    s_nop 11
    """)
    for x in rowmax(c, 10, False): k(x)
    k(f"""
    s_add_u32 s46, s46, {KVT}
    s_cmp_lt_u32 s46, {64*KVT}
    s_cbranch_scc1 {L1}
    """)
    set_m(10)
    for i in range(16): k(f"v_mov_b32 v{O+i}, 0")
    k(f"""
    s_mov_b32 s46, 0
    {L2}:
    buffer_load_dwordx4 v[{K1}:{K1+3}], v{VK1}, s[16:19], s46 offen
    buffer_load_dwordx2 v[{K2}:{K2+1}], v{VK2}, s[16:19], s46 offen
    buffer_load_dwordx4 v[{V0}:{V0+3}], v{VV}, s[16:19], s46 offen offset:1280
    buffer_load_dwordx4 v[{V1}:{V1+3}], v{VV}, s[16:19], s46 offen offset:{1280+672}
    s_waitcnt vmcnt(0)
    {qa(c)}
    {qb(c)}
    s_nop 11
    """)
    for i in range(16): k(f"v_exp_f32 v{c+i}, v{c+i}")
    k(f"""
    s_nop 1
    {pv(V0, c)}
    {pv(V1, c+8)}
    s_add_u32 s46, s46, {KVT}
    s_cmp_lt_u32 s46, {64*KVT}
    s_cbranch_scc1 {L2}
    s_nop 11
    v_mov_b32 v10, v{O+8}
    v_mov_b32 v11, v{O+8}
    s_nop 1
    v_permlane32_swap_b32 v10, v11
    s_branch {Lfin}
    """)
    return k, dict(grid=256, block=512, lds=3*8*KVT+3072, vgpr=108)
```

```python
from common import *

def emit_bundle(k, b):
    if len(b) == 2 and "m0" in b[0]: k(b[0]); k("s_nop 0"); k(b[1])
    else:
        for x in b: k(x)

def proj(down):
    k = K("down" if down else "wo")
    Lend, Lk1 = k.label("end"), k.label("kh1")
    KD = 1536 if down else 640
    NS = 6 if down else 5
    NST = KD//128
    ACC, BF, AR, EX = 16, 64, 76, 176
    VDMA, VTF, VTH, VTF2, VTH2, VA = 1, 6, 7, 8, 9, 10
    XCH = 2*NS*10240
    AW = KD//16*1024
    stamp_init(k)
    k(f"""
    s_cmp_ge_u32 s2, 256
    s_cbranch_scc1 {Lend}
    s_load_dwordx2 s[4:5], s[0:1], {A_WD if down else A_WO}
    s_load_dwordx2 s[6:7], s[0:1], {A_WS}
    s_load_dwordx2 s[8:9], s[0:1], {A_OUT if down else A_X}
    s_and_b32 s12, s2, 7
    s_lshr_b32 s13, s2, 3
    """)
    if down:
        k("""
        s_lshr_b32 s14, s12, 1
        s_lshl_b32 s14, s14, 3
        s_lshr_b32 s15, s13, 2
        s_add_u32 s14, s14, s15            ; mb
        s_and_b32 s15, s12, 1
        s_lshl_b32 s15, s15, 2
        s_and_b32 s13, s13, 3
        s_add_u32 s15, s15, s13            ; nb
        """)
    else:
        k("""
        s_lshl_b32 s14, s12, 2
        s_lshr_b32 s15, s13, 3
        s_add_u32 s14, s14, s15            ; mb
        s_and_b32 s15, s13, 7              ; nb
        """)
    k(f"""
    v_lshrrev_b32 v16, 6, v0
    v_and_b32 v17, 63, v0
    v_readfirstlane_b32 s29, v16
    v_lshlrev_b32 v{VA}, 4, v17
    s_lshr_b32 s12, s29, 1             ; kh
    s_and_b32 s13, s29, 1              ; tt
    s_lshl_b32 s14, s14, 1
    s_add_u32 s14, s14, s13
    s_mul_i32 s30, s12, {KD//2}
    s_lshl_b32 s31, s13, 5
    s_add_u32 s30, s30, s31
    s_mul_i32 s30, s30, 1280
    s_mul_i32 s31, s15, 160
    s_add_u32 s30, s30, s31
    s_mul_i32 s32, s12, {NS*10240}
    s_mul_i32 s33, s13, 5120
    s_add_u32 s32, s32, s33
    s_mul_i32 s34, s14, {AW}
    s_mul_i32 s35, s12, {AW//2}
    s_add_u32 s34, s34, s35
    s_add_u32 s34, s34, {WS_HH if down else WS_O}
    """)
    for i in range(5):
        k(f"""
        v_add_u32 v18, {64*i}, v17
        v_mul_u32_u24 v19, 205, v18
        v_lshrrev_b32 v19, 13, v19         ; rg = P/40
        v_mul_u32_u24 v20, 40, v19
        v_sub_u32 v18, v18, v20            ; rem
        v_cmp_lt_u32 vcc, 31, v18
        v_bfe_u32 v20, v18, 2, 2
        v_bfe_u32 v21, v18, 1, 2
        v_cndmask_b32 v20, v20, v21, vcc   ; row
        v_and_b32 v21, 3, v18
        v_and_b32 v22, 1, v18
        v_cndmask_b32 v21, v21, v22, vcc   ; piece
        v_lshl_add_u32 v19, v19, 2, v20
        v_mul_u32_u24 v19, 1280, v19
        v_lshrrev_b32 v18, 4, v18          ; cb
        v_lshl_add_u32 v19, v18, 6, v19
        v_lshl_add_u32 v{VDMA+i}, v21, 4, v19
        """)
    k("s_waitcnt lgkmcnt(0)")
    k(f"""
    s_mov_b32 s16, s4
    s_mov_b32 s17, s5
    s_add_u32 s18, s12, 1
    s_mul_i32 s18, s18, {KD//2*1280}
    s_mov_b32 s19, 0x20000
    s_add_u32 s24, s6, s34
    s_addc_u32 s25, s7, 0
    s_mov_b32 s26, {AW//2}
    s_mov_b32 s27, 0x20000
    s_mov_b32 s33, 0
    """)
    srd(k, 20, 6, WS_END)
    srd(k, 40, 8, 2048*1280)
    def group(c):
        g = []
        for i in range(5):
            g.append([f"s_add_u32 m0, s32, {(c % NS)*10240 + 1024*i}", f"buffer_load_dwordx4 v{VDMA+i}, s[16:19], s30 offen lds"])
        for i in range(4):
            r = AR + 16*(c % NS) + 4*i
            g.append([f"buffer_load_dwordx4 v[{r}:{r+3}], v{VA}, s[24:27], s33 offen offset:{1024*i}"])
        g.append([f"s_add_u32 s30, s30, {64*1280}", "s_add_u32 s33, s33, 4096"])
        return g
    npro = 5
    for c in range(npro):
        for b in (group(c) if (c < npro-1 or not down) else group(c)[:3]): emit_bundle(k, b)
    k(f"""
    v_bfe_u32 v18, v17, 4, 1           ; G&1
    v_lshrrev_b32 v19, 5, v17          ; hh
    v_bfe_u32 v20, v17, 2, 2           ; r
    v_and_b32 v21, 1, v17
    v_bfe_u32 v22, v17, 1, 1
    v_lshl_add_u32 v21, v21, 1, v22    ; 2(c&1)+(c>>1)
    v_lshlrev_b32 v21, 3, v21
    s_mul_i32 s35, s12, {NS*10240}
    v_add_u32 v21, s35, v21
    v_lshl_add_u32 v22, v20, 5, v21
    v_lshl_add_u32 v21, v18, 5, v21
    v_lshl_add_u32 v21, v20, 6, v21
    v_mul_u32_u24 v23, {1280 if down else 640}, v19
    v_add_u32 v{VTF}, v21, v23
    v_add_u32 v{VTH}, v22, v23
    """)
    if not down:
        k(f"v_mul_u32_u24 v23, 6400, v19\nv_add_u32 v{VTF2}, v21, v23\nv_add_u32 v{VTH2}, v22, v23")
    k(f"""
    v_and_b32 v18, 31, v17
    s_lshl_b32 s35, s14, 5
    v_add_u32 v18, s35, v18            ; token
    v_mul_u32_u24 v11, 1280, v18
    v_lshl_add_u32 v11, v19, 4, v11
    v_lshlrev_b32 v12, 5, v19
    v_lshlrev_b32 v14, 7, v18
    s_mul_i32 s35, s13, 10240
    s_add_u32 s35, s35, {XCH}
    v_add_u32 v13, s35, v{VA}
    s_mul_i32 s36, s15, 320
    s_mul_i32 s37, s14, 40
    s_mul_i32 s38, s15, 5
    s_add_u32 s37, s37, s38
    s_lshl_b32 s37, s37, 10
    """)
    for i in range(48): k(f"v_mov_b32 v{ACC+i}, 0")
    def trreads(s, t):
        L = []
        for jj in range(2):
            if down:
                R = (4*s + jj) % (16*NS); base = (VTF, VTF, VTH)[t]
            else:
                s_ = s % 20; G, r = divmod(s_, 5)
                if r < 4: R = 5*(4*G + r) + 2*jj; base = (VTF, VTF, VTH)[t]
                else: R = 5*(4*G + jj) + 4; base = (VTF2, VTF2, VTH2)[t]
            L.append(f"ds_read_b64_tr_b16 v[{BF+4*t+2*jj}:{BF+4*t+2*jj+1}], v{base} offset:{R*640 + 256*t}")
        return L
    tot = 9*(npro-1) + (3 if down else 9)
    k(f"s_waitcnt vmcnt({tot-9})\ns_barrier")
    stamp(k, 1)
    for t in range(3):
        for x in trreads(0, t): k(x)
    def epi_loads(qs):
        L = []
        for n, q in enumerate(qs):
            e = EX + 20*n
            if down:
                L.append(f"s_add_u32 s39, s37, {WS_X2 + 1024*q}")
                L.append(f"buffer_load_dwordx4 v[{e}:{e+3}], v{VA}, s[20:23], s39 offen")
                L.append(f"s_add_u32 s39, s36, {WS_MOD + 5*2560}")
                for j in range(2): L.append(f"buffer_load_dwordx4 v[{e+4+4*j}:{e+7+4*j}], v12, s[20:23], s39 offen offset:{64*q+16*j}")
            else:
                L.append(f"buffer_load_dwordx4 v[{e}:{e+3}], v11, s[40:43], s31 offen offset:{32*q}")
                L.append(f"s_add_u32 s39, s36, {WS_MOD + 2*2560}")
                for j in range(2): L.append(f"buffer_load_dwordx4 v[{e+4+4*j}:{e+7+4*j}], v12, s[20:23], s39 offen offset:{64*q+16*j}")
                L.append(f"s_add_u32 s39, s36, {WS_MOD + 4*2560}")
                for j in range(2): L.append(f"buffer_load_dwordx4 v[{e+12+4*j}:{e+15+4*j}], v12, s[20:23], s39 offen offset:{64*q+16*j}")
        return L
    def step(s, vm):
        for t in range(3):
            d = vr(ACC+16*t, 16); a = AR + 4*(s % (4*NS))
            m = f"v_mfma_f32_32x32x16_bf16 {d}, {vr(BF+4*t, 4)}, {vr(a, 4)}, {d}"
            b = vm[t] if t < len(vm) else []
            k("s_waitcnt lgkmcnt(4)")
            if len(b) == 2 and "m0" in b[0]: k(b[0]); k(m); k(b[1])
            else:
                k(m)
                for x in b: k(x)
            for x in trreads(s+1, t): k(x)
    if down:
        Ll = k.label("loop")
        k(f"s_mov_b32 s44, 0\n.p2align 3\n{Ll}:")
        pend = group(4)[3:]
        for s in range(24):
            if s % 4 == 3:
                k("s_waitcnt vmcnt(27)\ns_barrier")
                pend = group(s//4 + 5)
            nv = {3: 3, 0: 3, 1: 3, 2: 1}[s % 4]
            step(s, pend[:nv]); pend = pend[nv:]
        k(f"s_add_u32 s44, s44, 1\ns_cmp_lt_u32 s44, 2\ns_cbranch_scc1 {Ll}")
    else:
        bar = {2: 1, 6: 2, 10: 3, 15: 4}
        for s in range(20):
            if s in bar: k(f"s_waitcnt vmcnt({9*(4-bar[s])})\ns_barrier")
            step(s, [])
    stamp(k, 2)
    k(f"s_cmp_eq_u32 s12, 1\ns_cbranch_scc1 {Lk1}")
    def epilogue(kh):
        mine = [0, 1, 2] if kh == 0 else [3, 4]
        other = [3, 4] if kh == 0 else [0, 1, 2]
        for x in epi_loads(mine): k(x)
        k("s_nop 3")
        for q in other:
            for j in range(2): k(f"ds_write_b128 v13, v[{ACC+8*q+4*j}:{ACC+8*q+4*j+3}] offset:{2048*q+1024*j}")
        k(f"s_waitcnt vmcnt({(3 if down else 5)*len(mine)}) lgkmcnt(0)\ns_barrier")
        R = AR
        for n, q in enumerate(mine):
            for j in range(2): k(f"ds_read_b128 v[{R+8*n+4*j}:{R+8*n+4*j+3}], v13 offset:{2048*q+1024*j}")
        k("s_mov_b32 s45, 0xffff0000")
        per = 3 if down else 5
        U = AR + 32; SUM = AR + 40; SQ = AR + 42; P1 = AR + 44
        for n, q in enumerate(mine):
            e = EX + 20*n; a = ACC + 8*q
            nst = n*(1 if down else 2)
            k(f"s_waitcnt vmcnt({per*(len(mine)-1-n) + nst}) lgkmcnt({2*(len(mine)-1-n)})")
            for j in range(4): k(f"v_pk_add_f32 v[{a+2*j}:{a+2*j+1}], v[{a+2*j}:{a+2*j+1}], v[{R+8*n+2*j}:{R+8*n+2*j+1}]")
            for j in range(4): k(f"v_lshlrev_b32 v{U+2*j}, 16, v{e+j}\nv_and_b32 v{U+2*j+1}, s45, v{e+j}")
            for j in range(4): k(f"v_pk_fma_f32 v[{a+2*j}:{a+2*j+1}], v[{a+2*j}:{a+2*j+1}], v[{e+4+2*j}:{e+5+2*j}], v[{U+2*j}:{U+2*j+1}]")
            o = P1 + 8*n
            for j in range(4): k(f"v_cvt_pk_bf16_f32 v{o+j}, v{a+2*j}, v{a+2*j+1}")
            if down:
                k(f"buffer_store_dwordx4 v[{o}:{o+3}], v11, s[40:43], s31 offen offset:{32*q}")
            else:
                k(f"s_add_u32 s39, s37, {WS_X2 + 1024*q}")
                k(f"buffer_store_dwordx4 v[{o}:{o+3}], v{VA}, s[20:23], s39 offen")
                for j in range(4): k(f"v_pk_mul_f32 v[{U+2*j}:{U+2*j+1}], v[{a+2*j}:{a+2*j+1}], v[{e+12+2*j}:{e+13+2*j}]")
                for j in range(4): k(f"v_cvt_pk_bf16_f32 v{o+4+j}, v{U+2*j}, v{U+2*j+1}")
                k(f"s_add_u32 s39, s37, {WS_Y2 + 1024*q}")
                k(f"buffer_store_dwordx4 v[{o+4}:{o+7}], v{VA}, s[20:23], s39 offen")
                for j in range(4):
                    if n == 0 and j == 0:
                        k(f"v_pk_add_f32 v[{SUM}:{SUM+1}], v[{a}:{a+1}], v[{a+2}:{a+3}]")
                        k(f"v_pk_mul_f32 v[{SQ}:{SQ+1}], v[{a}:{a+1}], v[{a}:{a+1}]")
                    else:
                        if not (n == 0 and j == 1): k(f"v_pk_add_f32 v[{SUM}:{SUM+1}], v[{SUM}:{SUM+1}], v[{a+2*j}:{a+2*j+1}]")
                        k(f"v_pk_fma_f32 v[{SQ}:{SQ+1}], v[{a+2*j}:{a+2*j+1}], v[{a+2*j}:{a+2*j+1}], v[{SQ}:{SQ+1}]")
        if not down:
            k(f"""
            v_add_f32 v{SUM}, v{SUM}, v{SUM+1}
            v_add_f32 v{SUM+1}, v{SQ}, v{SQ+1}
            s_lshl_b32 s39, s15, 4
            s_add_u32 s39, s39, {WS_STAT + 8*kh}
            v_permlane32_swap_b32 v{SUM}, v{SUM+1}
            v_lshrrev_b32 v12, 3, v12
            v_add_u32 v14, v14, v12
            v_add_f32 v{SUM}, v{SUM}, v{SUM+1}
            buffer_store_dword v{SUM}, v14, s[20:23], s39 offen
            """)
        stamp_flush(k, 5 if down else 3, 4, 20)
        k("s_endpgm")
    epilogue(0)
    k(f"{Lk1}:")
    epilogue(1)
    k(f"{Lend}:\ns_endpgm")
    return k, dict(grid=256, block=256, lds=XCH + 20480, vgpr=240)
def k4(): return proj(False)
```

```python
from common import *
from k4 import emit_bundle

def k5():
    k = K("gateup")
    Lend = k.label("end")
    ACC, BF, AR, ST = 16, 112, 136, 216
    VDMA, VT, VA, VU = 1, 4, 6, 7
    NS = 5; REG = NS*12288; TAB = 2*REG
    stamp_init(k)
    k(f"""
    s_cmp_ge_u32 s2, 256
    s_cbranch_scc1 {Lend}
    s_load_dwordx4 s[8:11], s[0:1], {A_WG}
    s_load_dwordx2 s[6:7], s[0:1], {A_WS}
    s_and_b32 s12, s2, 7
    s_lshr_b32 s13, s2, 3
    s_lshr_b32 s14, s12, 1
    s_lshl_b32 s14, s14, 2
    s_lshr_b32 s15, s13, 3
    s_add_u32 s14, s14, s15            ; mblk
    s_and_b32 s15, s12, 1
    s_lshl_b32 s15, s15, 3
    s_and_b32 s13, s13, 7
    s_add_u32 s15, s15, s13            ; fb
    v_lshrrev_b32 v16, 6, v0
    v_and_b32 v17, 63, v0
    v_readfirstlane_b32 s29, v16
    v_lshlrev_b32 v{VA}, 4, v17
    s_lshl_b32 s14, s14, 2
    s_add_u32 s14, s14, s29
    s_lshr_b32 s12, s29, 1
    s_and_b32 s13, s29, 1
    s_mul_i32 s30, s13, {32*3072}
    s_mul_i32 s31, s15, 192
    s_add_u32 s30, s30, s31
    s_add_u32 s31, s30, {16*3072}
    s_mul_i32 s32, s12, {REG}
    s_mul_i32 s33, s13, 6144
    s_add_u32 s32, s32, s33
    s_mul_i32 s34, s14, 40960
    s_add_u32 s34, s34, {WS_Y2}
    v_lshrrev_b32 v18, 4, v17
    v_bfe_u32 v19, v17, 2, 2           ; row
    v_and_b32 v20, 3, v17              ; piece
    """)
    for i in range(3):
        k(f"""
        v_add_u32 v21, {4*i}, v18
        v_mul_u32_u24 v22, 11, v21
        v_lshrrev_b32 v22, 5, v22          ; rg = b/3
        v_mul_u32_u24 v23, 3, v22
        v_sub_u32 v21, v21, v23            ; cb
        v_lshl_add_u32 v22, v22, 2, v19
        v_mul_u32_u24 v22, 3072, v22
        v_lshl_add_u32 v22, v21, 6, v22
        v_lshl_add_u32 v{VDMA+i}, v20, 4, v22
        """)
    k(f"""
    v_mul_u32_u24 v21, 43, v0
    v_lshrrev_b32 v21, 10, v21         ; t/24
    v_mul_u32_u24 v22, {6144 - 384}, v21
    v_lshl_add_u32 v22, v0, 4, v22
    v_and_b32 v23, 31, v17
    s_lshl_b32 s35, s14, 5
    v_add_u32 v23, s35, v23
    v_lshrrev_b32 v24, 5, v17          ; hh
    v_lshlrev_b32 v23, 7, v23
    v_lshl_add_u32 v23, v24, 6, v23
    s_mul_i32 s35, s15, 384
    s_add_u32 s35, s35, {WS_UC}
    s_mov_b32 s36, {WS_STAT}
    s_cmp_eq_u32 s12, 1
    s_waitcnt lgkmcnt(0)
    s_cselect_b32 s16, s10, s8
    s_cselect_b32 s17, s11, s9
    s_mov_b32 s18, {640*3072}
    s_mov_b32 s19, 0x20000
    s_add_u32 s24, s6, s34
    s_addc_u32 s25, s7, 0
    s_mov_b32 s26, 40960
    s_mov_b32 s27, 0x20000
    s_mov_b32 s33, 0
    """)
    srd(k, 20, 6, WS_END)
    def group(c):
        g = []
        for i in range(6):
            g.append([f"s_add_u32 m0, s32, {(c % NS)*12288 + 1024*i}", f"buffer_load_dwordx4 v{VDMA+i%3}, s[16:19], s{30+i//3} offen lds"])
        for i in range(4):
            r = AR + 16*(c % NS) + 4*i
            g.append([f"buffer_load_dwordx4 v[{r}:{r+3}], v{VA}, s[24:27], s33 offen offset:{1024*i}"])
        g.append([f"s_add_u32 s30, s30, {64*3072}", f"s_add_u32 s31, s31, {64*3072}", "s_add_u32 s33, s33, 4096"])
        return g
    for b in group(0): emit_bundle(k, b)
    k("buffer_load_dwordx4 v[28:31], v22, s[20:23], s35 offen")
    for j in range(4): k(f"buffer_load_dwordx4 v[{ST+4*j}:{ST+4*j+3}], v23, s[20:23], s36 offen offset:{16*j}")
    for c in range(1, 4):
        for b in (group(c) if c < 3 else group(c)[:3]): emit_bundle(k, b)
    k(f"""
    v_and_b32 v18, 1, v18              ; G&1
    v_and_b32 v21, 1, v17
    v_bfe_u32 v22, v17, 1, 1
    v_lshl_add_u32 v21, v21, 1, v22
    v_lshl_add_u32 v21, v18, 2, v21
    v_lshlrev_b32 v21, 3, v21
    v_lshl_add_u32 v21, v19, 6, v21
    v_mul_u32_u24 v22, 1536, v24
    v_add_u32 v{VT}, v21, v22
    v_add_u32 v{VT+1}, {REG}, v{VT}
    v_lshlrev_b32 v{VU}, 5, v24
    v_add_u32 v{VU}, {TAB}, v{VU}
    v_lshlrev_b32 v22, 4, v0
    v_add_u32 v22, {TAB}, v22
    v_cmp_gt_u32 vcc, 96, v0
    s_waitcnt vmcnt(27)
    s_and_saveexec_b64 s[38:39], vcc
    ds_write_b128 v22, v[28:31]
    s_mov_b64 exec, s[38:39]
    """)
    for i in range(96): k(f"v_mov_b32 v{ACC+i}, 0")
    k("s_waitcnt lgkmcnt(0)\ns_barrier")
    stamp(k, 1)
    def trreads(s, t):
        return [f"ds_read_b64_tr_b16 v[{BF+4*t+2*jj}:{BF+4*t+2*jj+1}], v{VT+t//3} offset:{((4*s+jj) % 80)*768 + 256*(t % 3)}" for jj in range(2)]
    for t in range(6):
        for x in trreads(0, t): k(x)
    Ll = k.label("loop")
    k(f"s_mov_b32 s44, 0\n.p2align 3\n{Ll}:")
    pend = group(3)[3:]
    for s in range(20):
        if s % 4 == 3:
            k("s_waitcnt vmcnt(20)\ns_barrier")
            pend = group(s//4 + 4)
        nv = {3: 3, 0: 3, 1: 3, 2: 2}[s % 4]
        vm = pend[:nv]; pend = pend[nv:]
        for t in range(6):
            d = vr(ACC+16*t, 16)
            m = f"v_mfma_f32_32x32x16_bf16 {d}, {vr(BF+4*t, 4)}, {vr(AR+4*s, 4)}, {d}"
            b = vm[t//2] if t % 2 == 1 and t//2 < len(vm) else []
            if t % 2 == 0: k("s_waitcnt lgkmcnt(8)")
            if len(b) == 2 and "m0" in b[0]: k(b[0]); k(m); k(b[1])
            else:
                k(m)
                for x in b: k(x)
            for x in trreads(s+1, t): k(x)
    k(f"s_add_u32 s44, s44, 1\ns_cmp_lt_u32 s44, 2\ns_cbranch_scc1 {Ll}")
    stamp(k, 2)
    UC = AR
    def ucreads(q):
        b = UC + 32*(q & 1)
        return [f"ds_read_b128 v[{b+8*v_+4*j}:{b+8*v_+4*j+3}], v{VU} offset:{384*v_ + 64*q + 16*j}" for v_ in range(4) for j in range(2)]
    k("s_waitcnt vmcnt(0)")
    for x in ucreads(0): k(x)
    for j in range(1, 8): k(f"v_pk_add_f32 v[{ST}:{ST+1}], v[{ST}:{ST+1}], v[{ST+2*j}:{ST+2*j+1}]")
    MU, RS, T = 8, 10, ST + 8
    k(f"""
    v_mov_b32 v{ST+2}, v{ST}
    v_mov_b32 v{ST+3}, v{ST+1}
    s_mul_i32 s37, s14, 96
    s_mul_i32 s38, s15, 6
    v_permlane32_swap_b32 v{ST}, v{ST+2}
    v_permlane32_swap_b32 v{ST+1}, v{ST+3}
    s_add_u32 s37, s37, s38
    s_lshl_b32 s37, s37, 10
    s_add_u32 s37, s37, {WS_HH}
    v_pk_add_f32 v[{ST}:{ST+1}], v[{ST}:{ST+1}], v[{ST+2}:{ST+3}]
    v_mul_f32 v{MU}, {f32(-1.0/640)}, v{ST}          ; -mean
    v_mul_f32 v{ST+1}, {f32(1.0/640)}, v{ST+1}
    v_fma_f32 v{ST+1}, -v{MU}, v{MU}, v{ST+1}
    v_max_f32 v{ST+1}, 0, v{ST+1}
    v_add_f32 v{ST+1}, {f32(1e-5)}, v{ST+1}
    v_rsq_f32 v{RS}, v{ST+1}
    s_mov_b32 s40, {f32(-2*LOG2E*0.7978845608028654*0.044715)}
    s_mov_b32 s41, s40
    v_mov_b32 v12, {f32(-2*LOG2E*0.7978845608028654)}
    """)
    for q in range(6):
        b = UC + 32*(q & 1); g = ACC + 8*q; u = ACC + 48 + 8*q
        if q < 5:
            for x in ucreads(q+1): k(x)
            k("s_waitcnt lgkmcnt(8)")
        else: k("s_waitcnt lgkmcnt(0)")
        P = lambda r, j: f"v[{r+2*j}:{r+2*j+1}]"
        for j in range(4): k(f"v_pk_fma_f32 {P(g,j)}, {P(b,j)}, v[{MU}:{MU+1}], {P(g,j)} op_sel_hi:[1,0,1]")
        for j in range(4): k(f"v_pk_fma_f32 {P(g,j)}, {P(g,j)}, v[{RS}:{RS+1}], {P(b+8,j)} op_sel_hi:[1,0,1]")
        for j in range(4): k(f"v_pk_mul_f32 {P(T,j)}, {P(g,j)}, {P(g,j)}")
        for j in range(4): k(f"v_pk_fma_f32 {P(T,j)}, {P(T,j)}, s[40:41], v[12:13] op_sel_hi:[1,1,0]")
        for j in range(4): k(f"v_pk_mul_f32 {P(T,j)}, {P(T,j)}, {P(g,j)}")
        for j in range(8): k(f"v_exp_f32 v{T+j}, v{T+j}")
        for j in range(4): k(f"v_pk_fma_f32 {P(u,j)}, {P(b+16,j)}, v[{MU}:{MU+1}], {P(u,j)} op_sel_hi:[1,0,1]")
        for j in range(4): k(f"v_pk_add_f32 {P(T,j)}, {P(T,j)}, 1.0 op_sel_hi:[1,0]")
        for j in range(8): k(f"v_rcp_f32 v{T+j}, v{T+j}")
        for j in range(4): k(f"v_pk_fma_f32 {P(u,j)}, {P(u,j)}, v[{RS}:{RS+1}], {P(b+24,j)} op_sel_hi:[1,0,1]")
        for j in range(4): k(f"v_pk_mul_f32 {P(g,j)}, {P(g,j)}, {P(T,j)}")
        for j in range(4): k(f"v_pk_mul_f32 {P(g,j)}, {P(g,j)}, {P(u,j)}")
        for j in range(4): k(f"v_cvt_pk_bf16_f32 v{u+j}, v{g+2*j}, v{g+2*j+1}")
        if q == 4: k("s_add_u32 s37, s37, 4096")
        k(f"buffer_store_dwordx4 v[{u}:{u+3}], v{VA}, s[20:23], s37 offen offset:{1024*(q % 4)}")
    stamp_flush(k, 4, 4, 20)
    k(f"{Lend}:\ns_endpgm")
    return k, dict(grid=256, block=256, lds=TAB + 1536, vgpr=240)
```

```python
import sys
import common
from common import *
from k1 import k1
from k2 import k2
from k3 import k3
from k4 import k4
from k5 import k5
from k6 import k6
def build(path, spin):
    k = K(NAME)
    k(f"""
    s_cmp_ge_u32 s2, 256
    s_cbranch_scc1 L_mono_end
    s_memrealtime s[96:97]
    v_mov_b32 v255, v0
    s_load_dwordx2 s[60:61], s[0:1], {A_DBG}
    s_waitcnt lgkmcnt(0)
    s_mov_b32 s62, 256
    s_mov_b32 s63, 0x20000
    s_mov_b32 s98, s96
    """)
    for i, fn in enumerate([k1, k2, k3, k4, k5, k6]):
        kk, cfg = fn()
        k(f"v_and_b32 v0, {cfg['block']-1}, v255")
        k("s_nop 1")
        for l in kk.L:
            k.L.append(f"s_branch L_ph{i}" if l == "s_endpgm" else l)
        k(f"L_ph{i}:\ns_mov_b64 exec, -1\ns_waitcnt vmcnt(0) lgkmcnt(0)\ns_nop 15\ns_nop 7")
        if i < 5:
            k(f"""
            s_barrier
            v_cmp_eq_u32 vcc, 0, v255
            s_and_saveexec_b64 s[58:59], vcc
            s_cbranch_execz L_sk{i}
            buffer_wbl2 sc1
            s_waitcnt vmcnt(0)
            v_mov_b32 v1, {i*4}
            v_mov_b32 v2, 1
            buffer_atomic_add v2, v1, s[60:63], 0 offen sc1
            s_mov_b32 s57, 0
            L_po{i}:
            buffer_load_dword v2, v1, s[60:63], 0 offen sc1
            s_waitcnt vmcnt(0)
            v_readfirstlane_b32 s56, v2
            s_add_u32 s57, s57, 1
            s_cmp_ge_u32 s57, 200000
            s_cbranch_scc1 L_dn{i}
            s_cmp_lt_u32 s56, 256
            s_cbranch_scc1 L_po{i}
            L_dn{i}:
            buffer_inv sc1
            s_waitcnt vmcnt(0)
            L_sk{i}:
            s_mov_b64 exec, -1
            s_barrier
            """)
    if spin:
        k(f"""
        s_cmp_lg_u32 s2, 0
        s_cbranch_scc1 L_mono_end
        L_sp:
        s_memrealtime s[96:97]
        s_waitcnt lgkmcnt(0)
        s_sub_u32 s96, s96, s98
        s_cmp_lt_u32 s96, 25000
        s_cbranch_scc1 L_sp
        """)
    k("L_mono_end:\ns_endpgm")
    code, kd = kernel_text(k, 256, 102)
    head = open("cdna_kernels/" + NAME + ".s.ref").read().split("; Override launch")[0]
    txt = head + "; @launch grid=(256,1,1) block=(512,1,1) lds=143360" + '\n.amdgcn_target "amdgcn-amd-amdhsa--gfx950"\n' + code + '.section .rodata,"a"\n' + kd
    open(path, "w").write(txt)
    lst = txt.replace("; @launch grid", f"; @launch kernel={NAME}_kernel grid")
    open(path.replace(".s", "_list.s"), "w").write(lst)
build("mono0.s", False); build("mono0_spin.s", True)
```

```python
from common import *
from sched import Sched, spread, simulate

class Track:
    def __init__(self, k, name, mx):
        self.k, self.name, self.mx, self.seq = k, name, mx, []
        self.waited, self.seen = set(), set()
    def op(self, tag):
        assert tag not in self.waited, f"op {tag} issued after its wait"
        self.seq.append(tag); self.seen.add(tag)
    def n(self, *tags):
        assert all(t in self.seen for t in tags), f"wait on unseen {tags}"
        self.waited |= set(tags)
        idx = [i for i, t in enumerate(self.seq) if t in tags]
        if not idx: return None
        return len(self.seq) - 1 - max(idx)
    def done(self, n): self.seq = self.seq[len(self.seq)-n:] if n else []

COST = lambda s: 8 if s.startswith(("v_exp", "v_rcp", "v_rsq", "v_permlane")) else 9 if s.startswith("buffer") else 5 if s.startswith("ds_") else 4

import os
def env(n, d): return type(d)(eval(os.environ[n])) if n in os.environ else d
EXP = env("EXP", 0); CPF = env("CPF", 1); ATTQ = env("ATTQ", 0); TOUCH = env("TOUCH", 0); FAST = env("FAST", 1); DLY1 = env("DLY1", 4); MAP8 = env("MAP8", 1); USEM = env("USEM", 1); PFD = env("PFD", 0); SLEEP = env("SLEEP", 0); PRE_T = env("PRE_T", 58)
WDE = env("WDE", 118); SIGK = env("SIGK", 10); P2I = env("P2I", 6); P2C = env("P2C", 16); P3I = env("P3I", 60)
S5K = env("S5K", 6); P4I = env("P4I", 8); P5N = env("P5N", 5); P5C = env("P5C", 3); NWD = env("NWD", 12); UCA = env("UCA", 14)
DM1 = env("DM1", 45); DM2 = env("DM2", 45)
STAMPS = {"all": "q0 loop ost sig0 poll0 wo sig1 poll1 y2 p3 poll3 t1 t3", "gu": "loop wo west sig1 poll1 y2 p0 p1 p2 p3a p3b p3",
          "down": "p2 p3 tail sig4 poll3 sig5a sig5 t0 poll4 t1 poll5 t2 t3", "att": "karg iss q0 pre a8 a16 a24 a32 loop cmb ost sig0 poll0"}[os.environ.get("STAMPS", "all")].split()
WDN = env("WDN", [0, 5, 17, 29, 54]); NT0 = env("NT0", 4)
def back():
    k = K("back")
    Lend = k.label("end")
    vm, lg = Track(k, "vmcnt", 63), Track(k, "lgkmcnt", 15)
    def emit(x):
        if isinstance(x, str): k(x); return
        if x[0] == "call": x[1]()
        elif x[0] == "vm": k(x[2]); vm.op(x[1])
        elif x[0] == "lg": k(x[2]); lg.op(x[1])
        elif x[0] == "wait":
            p = []
            for tr, tags in ((vm, x[1]), (lg, x[2])):
                n = tr.n(*tags) if tags else None
                if n is not None:
                    n = min(n, tr.mx); p.append(f"{tr.name}({n})"); tr.done(n)
            if p: k("s_waitcnt " + " ".join(p))
    def E(L):
        for x in L: emit(x)
    cost = lambda x: COST(x) if isinstance(x, str) else 4 if x[0] == "wait" else COST(x[2])
    def pace(work, loads, every):
        c = 0; loads = list(loads)
        for x in work:
            emit(x); c += cost(x)
            if c >= every and loads: E(loads.pop(0)); c = 0
        return loads

    sc = Sched(k, emit)
    def report(name, n0):
        if os.environ.get("REP"): print(f"  {name}: est {simulate(k.L[n0:])} cycles, {len(k.L)-n0} lines")
    VL, VA, VLA, VB2, VX, VX4, VVP, VV4, VST, VT2, VCA, VCB, VFL = 1, 2, 3, 6, 7, 8, 9, 10, 11, 12, 13, 14, 15
    X2 = 16
    A0, BR, XR, GA, S2, T0 = 36, 116, 176, 188, 208, 228
    ACC, AR, EXA, CON, TMP, OUT, WD0 = 36, 84, 114, 120, 132, 144, 156
    EXW = 108; EXS = 248
    VCM = 118; VLA2 = 119; VPC = 152; VSG = 153; VSL = 154; VTH = 155; VSA = 5
    VPA = 250; VAT = 254; VP1 = 255
    vpc = lambda d, t: f"v_lshlrev_b32 v{d}, 9, v{VFL}" if MAP8 else f"v_and_b32 v{d}, 28, v{VFL}\nv_lshlrev_b32 v{d}, 9, v{d}\nv_and_b32 v{t}, 32, v{VFL}\nv_lshl_add_u32 v{d}, v{t}, 3, v{d}"
    SLOT = 40960; XLDS = 102400; TABH = 3*SLOT; CONA = TABH + 4096; CONB = CONA + 2048; XCH = CONB + 4096; LDS = XCH + 24576
    WS = "s[20:23]"
    P = lambda r, j: f"v[{r+2*j}:{r+2*j+1}]"
    S = [28, 44, 60, 76]; O = [92, 108, 124, 140]; Q = [156, 162, 168, 174]; FR = 180; KT = 236
    IDX, VK2, VV, VTB, VXD = 242, 243, 244, 245, 246
    xaddr = "\n".join(f"v_add_u32 v25, {64*i}, v17\nv_min_u32 v25, 159, v25\nv_mul_u32_u24 v26, 205, v25\nv_lshrrev_b32 v26, 11, v26\nv_mul_u32_u24 v26, 1120, v26\nv_lshl_add_u32 v{VXD+i}, v25, 4, v26" for i in range(3))
    xrd = [[("lg", "xr", f"ds_read_b128 {vr(XR+4*pr, 4)}, v{XR+10} offset:{64*pr}")] for pr in range(2)] + [[("lg", "xr", f"ds_read_b64 {vr(XR+8, 2)}, v{XR+11} offset:128")]]
    attmap = "s_lshr_b32 s12, s2, 3\ns_and_b32 s13, s2, 7" if ATTQ else "s_and_b32 s12, s2, 7\ns_bfe_u32 s13, s2, 0x20003\ns_lshl2_add_u32 s12, s12, s13\ns_lshr_b32 s13, s2, 5"
    stamp_init(k)
    sn = [0]
    def st_(nm):
        if nm in STAMPS: sn[0] += 1; stamp(k, sn[0])
    k(f"""
    s_cmp_ge_u32 s2, 256
    s_cbranch_scc1 {Lend}
    s_load_dwordx2 s[6:7], s[0:1], {A_WS}
    s_load_dwordx2 s[4:5], s[0:1], {A_X}
    s_load_dwordx2 s[8:9], s[0:1], {A_OUT}
    v_lshrrev_b32 v16, 6, v0
    v_and_b32 v17, 63, v0
    v_readfirstlane_b32 s29, v16       ; wave
    {attmap}
    s_and_b32 s14, s29, 1
    s_lshl1_add_u32 s13, s13, s14
    s_lshl_b32 s13, s13, 2
    s_mul_i32 s10, s12, {64*QT}
    s_mul_i32 s14, s13, {QT}
    s_add_u32 s10, s10, s14
    s_add_u32 s10, s10, {WS_Q}
    s_mul_i32 s11, s12, {64*KVT}
    s_add_u32 s11, s11, {WS_KV}
    s_lshr_b32 s14, s29, 1
    s_mul_i32 s3, s14, {32*KVT}
    s_add_u32 s3, s3, s11
    s_lshl1_add_u32 s13, s14, s13
    s_mul_i32 s63, s13, 40960
    s_lshr_b32 s14, s12, 3
    s_mul_i32 s14, s14, 10240
    s_add_u32 s63, s63, s14
    s_add_u32 s63, s63, {WS_O}
    s_and_b32 s14, s12, 7
    s_lshl_b32 s59, s14, 8
    s_add_u32 s59, s59, s63
    s_add_u32 s49, s59, 8192
    s_lshl_b32 s14, s14, 10
    s_add_u32 s63, s63, s14
    v_and_b32 v18, 31, v17
    v_lshrrev_b32 v19, 5, v17
    v_cmp_lt_u32 vcc, 31, v17
    v_lshlrev_b32 v27, 3, v18
    v_add_u32 v20, 1024, v27
    v_mov_b32 v21, {1280+320}
    v_cndmask_b32 v{VK2}, v20, v21, vcc
    v_cmp_lt_u32 vcc, 20, v18
    v_mul_u32_u24 v20, 336, v19
    v_lshl_add_u32 v20, v18, 4, v20
    v_mov_b32 v21, 0x40000000
    v_cndmask_b32 v{VV}, v20, v21, vcc
    v_mov_b32 v{IDX}, 0xdddd
    """)
    if MAP8: k("""
    s_and_b32 s12, s2, 7
    s_lshr_b32 s13, s2, 7
    s_lshl1_add_u32 s12, s12, s13      ; cluster
    s_bfe_u32 s13, s2, 0x10006         ; sub
    s_bfe_u32 s14, s2, 0x30003         ; nb
    s_bfe_u32 s15, s2, 0x40003
    """)
    else: k("""
    s_and_b32 s12, s2, 6
    s_lshr_b32 s13, s2, 6
    s_lshl1_add_u32 s12, s12, s13      ; cluster
    s_and_b32 s30, s2, 1
    s_bfe_u32 s13, s2, 0x10005         ; sub
    s_bfe_u32 s14, s2, 0x20003
    s_lshl2_add_u32 s14, s30, s14      ; nb
    s_bfe_u32 s15, s2, 0x30003
    s_lshl3_add_u32 s15, s30, s15
    """)
    k(f"v_lshlrev_b32 v{VL}, 4, v17\ns_waitcnt lgkmcnt(0)")
    st_("karg")
    srd(k, 20, 6, WS_END)
    def kvload(t):
        f = FR + 14*(t % 4)
        return [("vm", f"kv{t}", f"buffer_load_dwordx4 {vr(f, 4)}, v{VL}, {WS}, s3 offen"),
                ("vm", f"kv{t}", f"buffer_load_dwordx2 {vr(f+12, 2)}, v{VK2}, {WS}, s3 offen"),
                ("vm", f"kv{t}", f"buffer_load_dwordx4 {vr(f+4, 4)}, v{VV}, {WS}, s3 offen offset:1280"),
                ("vm", f"kv{t}", f"buffer_load_dwordx4 {vr(f+8, 4)}, v{VV}, {WS}, s3 offen offset:{1280+672}"),
                f"s_add_u32 s3, s3, {KVT}"]
    if USEM:
        emit(("vm", "q0", f"buffer_load_dwordx4 {vr(KT, 4)}, v{VL}, {WS}, s11 offen"))
        emit(("vm", "q0", f"buffer_load_dwordx2 {vr(KT+4, 2)}, v{VK2}, {WS}, s11 offen"))
    k(f"s_add_u32 s36, s10, {2*QT}")
    for b in range(4):
        emit(("vm", f"q{b}", f"buffer_load_dwordx4 {vr(Q[b], 4)}, v{VL}, {WS}, s{(10, 36)[b >> 1]} offen offset:{QT*(b & 1)}"))
        emit(("vm", f"q{b}", f"buffer_load_dwordx2 {vr(Q[b]+4, 2)}, v27, {WS}, s{(10, 36)[b >> 1]} offen offset:{QT*(b & 1) + 1024}"))
    E(kvload(0))
    k(f"""
    v_cmp_gt_u32 s[56:57], 32, v17
    s_mov_b32 s45, 0xffff0000
    s_lshl_b32 s28, s12, 2
    s_add_u32 s30, s28, s29
    s_mul_i32 s34, s14, 102400
    s_mul_i32 s35, s29, 25600
    s_add_u32 s34, s34, s35
    s_add_u32 s34, s34, {WS_PWO}
    s_mul_i32 s37, s14, 160
    s_mul_i32 s38, s14, 320
    s_lshl2_add_u32 s39, s15, s29
    s_mul_i32 s40, s39, 61440
    s_add_u32 s40, s40, {WS_PWG}
    s_and_b32 s43, s2, {0x87 if MAP8 else 0xc6}
    s_lshl_b32 s43, s43, 8
    s_add_u32 s43, s43, {WS_FLAG}
    s_lshr_b32 s97, s12, 1
    s_lshl_b32 s97, s97, {8 if ATTQ else 13}
    s_add_u32 s97, s97, {WS_FLAG}
    v_lshlrev_b32 v{VP1}, {8 if ATTQ else 5}, v27
    v_and_b32 v19, 15, v17
    v_lshlrev_b32 v{VFL}, 2, v19
    {vpc(VPA, 19)}
    ; x tile through LDS: piece P = 64i + lane -> row P/10, piece P%10
    s_mul_i32 s60, s29, 3072
    s_add_u32 s60, s60, {XLDS}
    s_lshl1_add_u32 s61, s30, s13
    s_mul_i32 s61, s61, {16*1280}
    s_add_u32 s61, s61, s37
    {xaddr}
    v_cmp_lt_u32 vcc, 19, v17
    v_mov_b32 v25, {WS_MOD + 2*2560}
    v_mov_b32 v26, {WS_MOD + 4*2560 - 320}
    v_cndmask_b32 v25, v25, v26, vcc
    v_cmp_lt_u32 vcc, 39, v17
    v_mov_b32 v26, {WS_MOD + 5*2560 - 640}
    s_lshl_b32 s36, s29, 10
    v_cndmask_b32 v25, v25, v26, vcc
    v_add_u32 v25, s38, v25
    s_add_u32 s62, s36, {TABH}
    s_add_u32 s36, s36, {WS_MODH + 3*1280}
    v_mov_b32 v26, s36
    s_cmp_eq_u32 s29, 3
    s_cselect_b64 vcc, -1, 0
    v_cndmask_b32 v25, v26, v25, vcc
    v_add_u32 v{VTB}, v25, v{VL}
    """)
    srd(k, 16, 4, 2048*1280)
    if PFD: k(f"""
    s_and_b32 s38, s2, 0xf8
    s_lshr_b32 s38, s38, 1
    s_add_u32 s38, s38, s29
    s_lshl_b32 s38, s38, {14 if MAP8 else 13}
    s_and_b32 s41, s2, {0 if MAP8 else 1}
    s_mul_i32 s41, s41, {120*8192}
    s_add_u32 s38, s38, s41
    s_add_u32 s38, s38, {WS_PWD}
    v_lshlrev_b32 v{VXD+3}, 5, v{VFL}
    """)
    if CPF:
        Lp = k.label("pc")
        k(f"""
        s_getpc_b64 s[4:5]
        {Lp}:
        v_lshlrev_b32 v{VXD+6}, 4, v27
        v_min_u32 v25, 47, v17
        s_mul_i32 s36, s29, 48
        v_add_lshl_u32 v25, s36, v25, 7
        v_min_u32 v{VXD+5}, L_text_end-{Lp}-16384-4, v25
        """)
    E(kvload(1))
    late1 = f"""
    v_lshrrev_b32 v18, 8, v{VL}        ; q
    v_lshlrev_b32 v{VV4}, 4, v18
    v_add_u32 v{VV4}, {TABH + 3072}, v{VV4}
    v_lshlrev_b32 v{VVP}, 5, v18
    v_add_u32 v{VVP}, {TABH + 3072}, v{VVP}
    v_cmp_eq_u32 vcc, 0, v0
    s_lshl_b32 s44, s2, 8
    s_add_u32 s44, s44, {WS_FLAG}
    v_mov_b32 v19, 0x40000000
    v_cndmask_b32_e64 v{VSA}, v19, 0, vcc
    """
    late2 = f"""
    v_lshrrev_b32 v19, 2, v{VFL}       ; tok
    v_lshlrev_b32 v20, 4, v19
    v_lshl_add_u32 v{VLA}, v18, 9, v20
    s_lshl_b32 s31, s13, 8
    v_add_u32 v{VA}, s31, v{VLA}
    s_mul_i32 s32, s30, 40960
    s_add_u32 s33, s32, {WS_O}         ; A offset
    v_add_u32 v{VLA+1}, {SLOT}, v{VLA}
    v_add_u32 v{VB2}, 51200, v{VL}
    s_lshl_b32 s36, s30, 5
    s_lshl4_add_u32 s36, s13, s36
    v_add_u32 v21, s36, v19            ; token
    v_mul_u32_u24 v21, 1280, v21
    v_lshl_add_u32 v{VX}, v18, 4, v21
    v_lshl_add_u32 v{VX4}, v18, 3, v21
    v_lshrrev_b32 v22, 1, v18          ; q>>1
    v_and_b32 v23, 1, v18
    v_lshlrev_b32 v23, 30, v23
    v_lshl_add_u32 v{VST}, v19, 3, v23
    v_lshl_add_u32 v{VST}, v22, 2, v{VST}
    v_lshl_add_u32 v24, v22, 8, v20
    v_add_u32 v{VT2}, v24, v23
    v_add_u32 v{VCA}, {CONA}, v20
    v_lshlrev_b32 v24, 5, v19
    v_lshl_add_u32 v24, v18, 3, v24
    v_add_u32 v{VCB}, {CONB}, v24
    v_and_b32 v24, 0x1ff, v{VA}
    v_lshrrev_b32 v24, 1, v24
    v_lshl_add_u32 v{VAT}, v18, 9, v24
    s_mul_i32 s46, s14, 5120
    s_add_u32 s46, s46, s32
    s_add_u32 s46, s46, {WS_Y2}
    s_add_u32 s47, s46, s31
    s_add_u32 s47, s47, 4096
    s_lshl1_add_u32 s48, s30, s13
    s_lshl3_add_u32 s48, s48, s14
    s_lshl_b32 s48, s48, 7
    s_add_u32 s48, s48, {WS_STAT}
    """
    late3 = f"""
    s_mul_i32 s41, s39, 1536
    s_lshl2_add_u32 s42, s14, s29
    s_mul_i32 s42, s42, 61440
    s_add_u32 s42, s42, {WS_PWD}
    s_mul_i32 s50, s28, 40960
    s_add_u32 s50, s50, {WS_Y2}
    s_lshl_b32 s51, s29, 11
    s_add_u32 s52, s50, s51
    s_mul_i32 s53, s29, 10240
    s_add_u32 s50, s50, s53
    s_add_u32 s50, s50, 8192
    s_lshl_b32 s54, s30, 11
    s_add_u32 s54, s54, {WS_STAT}
    s_mul_i32 s55, s28, 98304
    s_mul_i32 s59, s29, {48*512}
    s_add_u32 s55, s55, {WS_HH}
    s_add_u32 s58, s55, s59
    s_add_u32 s55, s55, s41
    s_mov_b32 s96, s55
    s_mov_b32 s24, s8
    s_mov_b32 s25, s9
    s_mov_b32 s26, {2048*1280}
    s_mov_b32 s27, 0x20000
    """
    def vec_reads(base, v, tag):
        g = [[("lg", tag, f"ds_read_b128 {vr(base+4*j, 4)}, v{VVP} offset:{320*v + 128*(j >> 1) + 16*(j & 1)}")] for j in range(4)]
        return g + [[("lg", tag, f"ds_read_b128 {vr(base+16, 4)}, v{VV4} offset:{320*v + 256}")]]
    def wg_load(n):
        b = [("vm", f"wg{n//3}", f"buffer_load_dwordx4 a[{4*n}:{4*n+3}], v{VL}, {WS}, s40 offen offset:{1024*(n & 3)}")]
        if n & 3 == 3: b.append("s_add_u32 s40, s40, 4096")
        return b
    def wd_reg(n): return vr(WD0 + 4*n, 4) if n < 25 else ar(240 + 4*(n-25), 4) if n < 29 else ar(4*(n-29), 4)
    def wd_load(n):
        b = [("vm", f"wd{n//5}", f"buffer_load_dwordx4 {wd_reg(n)}, v{VL}, {WS}, s42 offen offset:{1024*(n & 3)}")]
        if n & 3 == 3: b.append("s_add_u32 s42, s42, 4096")
        return b
    def bread(ks, t):
        o = (5*ks + t)*1024; r = BR + 20*(ks % 3) + 4*t
        base, o = (VL, o) if o < 51200 else (VB2, o - 51200)
        return ("lg", f"b{ks}_{t}", f"ds_read_b128 v[{r}:{r+3}], v{base} offset:{o}")
    for b in range(4):
        for i in range(16): k(f"v_mov_b32 v{O[b]+i}, 0")
    for i in range(4): k(f"v_mov_b32 v{FR+14*3+8+i}, 0")
    E(kvload(2))
    qa = lambda n, a, b: f"v_mfma_f32_32x32x16_bf16 {vr(n, 16)}, {vr(a, 4)}, {vr(b, 4)}, 0"
    qb = lambda n, a, b: f"v_mfma_f32_32x32x8_bf16 {vr(n, 16)}, {vr(a, 2)}, {vr(b+4, 2)}, {vr(n, 16)}"
    pv = lambda o, a, b: f"v_smfmac_f32_32x32x32_bf16 {vr(o, 16)}, {vr(a, 4)}, {vr(b, 8)}, v{IDX}"
    def rowmax(c, dst, first):
        if first: return [f"v_max3_f32 v{dst}, v{c}, v{c+1}, v{c+2}"] + [f"v_max3_f32 v{dst}, v{dst}, v{c+i}, v{c+i+1}" for i in range(3, 15, 2)] + [f"v_max_f32 v{dst}, v{dst}, v{c+15}"]
        return [f"v_max3_f32 v{dst}, v{dst}, v{c+i}, v{c+i+1}" for i in range(0, 16, 2)]
    st_("iss")
    for b in range(4):
        emit(("wait", [f"q{b}"], []))
        if b == 0: st_("q0")
        k(f"v_cndmask_b32 v{Q[b]+4}, 0, v{Q[b]+4}, s[56:57]\nv_cndmask_b32 v{Q[b]+5}, 0, v{Q[b]+5}, s[56:57]")
        if USEM: sc.flush([qa(S[b], KT, Q[b]), qb(S[b], KT+4, Q[b])])
    if USEM:
        for b in range(4): sc.flush(rowmax(S[b], 16+b, True) + [f"v_mov_b32 v{20+b}, v{16+b}"])
        sc.flush([f"v_permlane32_swap_b32 v{16+b}, v{20+b}" for b in range(4)])
        sc.flush([f"v_max_f32 v{16+b}, v{16+b}, v{20+b}" for b in range(4)])
        sc.flush([f"v_cvt_pk_bf16_f32 v{16+b}, -v{16+b}, 0" for b in range(4)])
        sc.flush([f"v_cndmask_b32 v{Q[b]+4}, v{16+b}, v{Q[b]+4}, s[56:57]" for b in range(4)])
    emit(("wait", ["kv0"], []))
    sc.flush([qa(S[0], FR, Q[0]), qb(S[0], FR+12, Q[0]), qa(S[1], FR, Q[1]), qb(S[1], FR+12, Q[1])])
    for i in range(8): k(f"v_mov_b32 v{S[3]+8+i}, 0")
    k("s_nop 1")
    pre = [(["s_mov_b32 m0, s62"], [("vm", "pre", f"buffer_load_dwordx4 v{VTB}, {WS}, 0 offen lds")])]
    for i in range(3): pre.append(([f"s_add_u32 m0, s60, {1024*i}"], [("vm", "pre", f"buffer_load_dwordx4 v{VXD+i}, s[16:19], s61 offen lds")]))
    for i in range(0, 25, 2):
        sca = [f"s_add_u32 m0, s35, {1024*i}"] + (["s_add_u32 s34, s34, 4096"] if i else []) if i % 4 == 0 else []
        pre.append((sca, [("vm", "pre", f"buffer_load_dwordx4 v{VL}, {WS}, s34 offen offset:{1024*(n & 3)} lds") for n in range(i, min(i+2, 25))]))
    for n in range(0, 60, 2):
        pre.append((["s_add_u32 s40, s40, 4096"] if n and n % 4 == 0 else [], [wg_load(n)[0], wg_load(n+1)[0]]))
    if PFD:
        for i in range(8 if MAP8 else 4):
            pre.append((["s_add_u32 s38, s38, 4096"] if i and i % 2 == 0 else [], [("vm", "pre", f"buffer_load_dword v26, v{VXD+3}, {WS}, s38 offen offset:{2048*(i & 1)}")]))
    if CPF:
        cp = lambda va: ("vm", "pre", f"global_load_dword v26, v{va}, s[4:5]")
        for n, at in enumerate((8, 20, 32)): pre.insert(at, (["s_add_u32 s4, s4, 4096", "s_addc_u32 s5, s5, 0"], [cp(VXD+6)]))
        pre.append((["s_add_u32 s4, s4, 4096", "s_addc_u32 s5, s5, 0"], [cp(VXD+5)]))
    if FAST: pre.append(([], [("vm", "pre", f"buffer_load_dword v26, v{VP1 if ATTQ else VPA}, {WS}, {'s97' if ATTQ else 's43'} offen offset:128 sc1")]))
    npre = len(pre); ip = 0; late_pre = []
    st_("pre")
    k(".p2align 3")
    for u in range(128):
        if u % 32 == 0: st_(f"a{u//4}")
        b = u & 3; t = u >> 2
        c = S[b]; p = S[(b-1) & 3]; n = S[(b+2) & 3]
        fk = FR + 14*(((u+2) >> 2) % 4); fv = FR + 14*(t % 4); fp = FR + 14*(((u-1) >> 2) % 4)
        e = lambda *ii: [k(f"v_exp_f32 v{c+i}, v{c+i}") for i in ii]
        sa = sb_ = sc_ = []
        if b == 0 and t + 3 < 32: kv = kvload(t+3); sa, sc_ = kv[0:2], kv[2:4]
        if b == 1:
            if t + 3 < 32: sa = kv[4:]
            if t + 1 < 32: sb_ = [("wait", [f"kv{t+1}"], [])]
        if b >= 2 and ip < npre and ip*PRE_T <= (2*t + b - 2)*npre:
            sa, sc_ = pre[ip]; ip += 1
        if EXP & 1 and b >= 2:
            late_pre += sa + ["s_nop 0"] + sc_; sa = sc_ = []
        if EXP & 2 and b < 2:
            for x in sa + sc_:
                if not isinstance(x, str): vm.seen.add(x[1])
            sa = sc_ = []
        e(0, 1)
        k(pv(O[(b-1) & 3], fp+8, p+8)); E(sa)
        e(2, 3, 4, 5)
        if u + 2 < 128: k(qa(n, fk, Q[(b+2) & 3]))
        E(sb_)
        e(6, 7, 8, 9)
        k(pv(O[b], fv+4, c)); E(sc_)
        e(10, 11, 12, 13)
        if u + 2 < 128: k(qb(n, fk+12, Q[(b+2) & 3]))
        e(14, 15)
    assert ip == npre
    st_("a32")
    E(late_pre)
    Lk1, Lj = k.label("kh1"), k.label("join")
    k(f"""
    s_mul_i32 s36, s29, 6144
    s_add_u32 s36, s36, {XCH}
    {pv(O[3], FR+14*3+8, S[3]+8)}
    v_add_u32 v16, s36, v{VL}
    s_xor_b32 s36, s29, 2
    s_mul_i32 s36, s36, 6144
    s_add_u32 s36, s36, {XCH}
    v_add_u32 v17, s36, v{VL}
    """)
    st_("loop")
    F = [S[0], S[1]]; RR = S[2]
    emit(("wait", ["pre"] + [f"wg{i}" for i in range(20)], []))
    k(f"s_cmp_ge_u32 s29, 2\ns_cbranch_scc1 {Lk1}")
    for kh in range(2):
        if kh: k(f"{Lk1}:")
        oth = [2 - 2*kh, 3 - 2*kh]
        sc.flush([f"ds_write_b128 v16, {vr(O[oth[i]]+4*j, 4)} offset:{3072*i + 1024*j}" for i in range(2) for j in range(3)])
        k("s_waitcnt lgkmcnt(0)\ns_barrier")
        for i in range(2):
            for j in range(3): k(f"ds_read_b128 {vr(RR+12*i+4*j, 4)}, v17 offset:{3072*i + 1024*j}")
        for i in range(2):
            k(f"s_waitcnt lgkmcnt({3-3*i})")
            for j in range(6): k(f"v_pk_add_f32 {P(F[i], j)}, {P(O[2*kh+i], j)}, {P(RR+12*i, j)}")
        if kh == 0: k(f"s_branch {Lj}")
    k(f"{Lj}:")
    st_("cmb")
    Lfb = [k.label("fb0"), k.label("fb1")]; Lrt = [k.label("rt0"), k.label("rt1")]
    for i in range(2):
        k(f"v_mov_b32 v{18+2*i}, v{F[i]+8}\nv_mov_b32 v{19+2*i}, v{F[i]+8}\nv_pk_mul_f32 v[22:23], {P(F[i], 0)}, 0 op_sel_hi:[1,0]")
        for j in range(1, 6): k(f"v_pk_fma_f32 v[22:23], {P(F[i], j)}, 0, v[22:23] op_sel_hi:[1,0,1]")
        k(f"""
        v_permlane32_swap_b32 v{18+2*i}, v{19+2*i}
        v_add_f32 v22, v22, v23
        v_add_f32 v22, v22, v{19+2*i}
        v_cmp_ngt_f32 vcc, {f32(2.0**120)}, v22
        s_cbranch_vccnz {Lfb[i]}
        """)
        if not USEM: k(f"v_cmp_nlt_f32 vcc, {f32(2.0**-80)}, v22\ns_cbranch_vccnz {Lfb[i]}")
        k(f"{Lrt[i]}:")
    k(f"""
    v_rcp_f32 v18, v19
    v_rcp_f32 v20, v21
    v_lshrrev_b32 v22, 9, v{VL}
    v_mul_u32_u24 v22, 40960, v22
    v_add_u32 v22, v22, v27
    s_add_u32 s36, s63, 40960
    """)
    for i in range(2):
        for j in range(6): k(f"v_pk_mul_f32 {P(F[i], j)}, {P(F[i], j)}, v[{18+2*i}:{19+2*i}] op_sel_hi:[1,0]")
        for j in (4, 5, 0, 1, 2, 3): k(f"v_cvt_pk_bf16_f32 v{RR+6*i+j}, v{F[i]+2*j}, v{F[i]+2*j+1}")
        emit(("vm", "o", f"buffer_store_dwordx4 {vr(RR+6*i, 4)}, v{VL}, {WS}, s{(63, 36)[i]} offen sc1"))
    k(f"v_permlane32_swap_b32 v{RR+4}, v{RR+10}\nv_permlane32_swap_b32 v{RR+5}, v{RR+11}")
    emit(("vm", "o", f"buffer_store_dwordx2 {vr(RR+4, 2)}, v22, {WS}, s49 offen sc1"))
    st_("ost")
    def signal(v, vd=VSG, touch=None):
        if touch and TOUCH: E(touch)
        k(f"v_mov_b32 v{vd}, {v+1}\ns_barrier")
        if FAST: emit(("vm", f"sg{v}", f"buffer_store_dword v{vd}, v{VSA}, {WS}, s44 offen offset:128"))
        emit(("vm", f"sg{v}", f"buffer_store_dword v{vd}, v{VSA}, {WS}, s44 offen sc1"))
    def pload(d, va, so, fast): return f"buffer_load_dword v{d}, v{va}, {WS}, {so} offen offset:{128*fast} sc1"
    def poll_issue(v, va=VPC, so="s43", fast=FAST): return ("vm", f"poll{v}", pload(0, va, so, fast))
    def poll_check(v, va=VPC, so="s43", fast=FAST):
        L, Lok = k.label("poll"), k.label("ok")
        emit(("wait", [f"poll{v}"], []))
        slow.append(f"""
        {L}:
        s_mov_b32 s49, 0
        {L}b:
        s_add_u32 s49, s49, 1
        s_and_b32 s36, s49, 3
        s_cselect_b32 s36, {128*fast}, 0
        s_add_u32 s36, s36, {so}
        {pload(0, va, "s36", 0)}
        s_waitcnt vmcnt(0)
        v_cmp_gt_u32 vcc, {v+1}, v0
        s_cbranch_vccz {Lok}
        s_cmp_lt_u32 s49, 0x40000
        s_cbranch_scc1 {L}b
        s_branch {Lok}
        """)
        k(f"v_cmp_gt_u32 vcc, {v+1}, v0\ns_cbranch_vccnz {L}\n{Lok}:")
    slow = []
    htouch = lambda: [("vm", "tch", f"buffer_load_dword v{VSL}, v{VTH}, {WS}, s96 offen sc1"), "s_add_u32 s96, s96, 98304"]
    VR = A0; UC = A0 + 16; VU = 30
    k(late1)
    k(f"""
    v_bfe_u32 v{VU}, v{VL}, 6, 1
    v_mul_u32_u24 v{VU}, 1280, v{VU}
    v_sub_u32 v{VU}, v{VV4}, v{VU}
    v_subrev_u32 v{VU}, {3072 - 1280}, v{VU}
    """)
    def vread(ks): return ("lg", f"v{ks}", f"ds_read_b128 {vr(VR+4*(ks % 4), 4)}, v{VU} offset:{64*ks}")
    for ks in range(3): emit(vread(ks))
    k(f"""
    v_mul_u32_u24 v{XR+10}, 40, v{VFL}
    v_add_u32 v{XR+10}, s60, v{XR+10}
    v_lshl_add_u32 v{XR+11}, v18, 3, v{XR+10}
    v_lshl_add_u32 v{XR+10}, v18, 4, v{XR+10}
    """)
    otouch = None
    if ATTQ:
        k(f"""
        v_and_b32 v32, 0x70, v{VL}
        v_lshlrev_b32 v32, 3, v32
        v_add_u32 v32, s63, v32
        v_and_b32 v33, 0x10, v{VL}
        v_lshlrev_b32 v33, 3, v33
        v_add_u32 v33, s49, v33
        v_cndmask_b32 v32, v33, v32, s[56:57]
        v_bfe_u32 v33, v{VL}, 7, 1
        v_mul_u32_u24 v33, 40960, v33
        v_add_u32 v32, v32, v33
        """)
        otouch = [("vm", "tch", f"buffer_load_dword v33, v32, {WS}, 0 offen sc1")]
    def ucsteps(k0, k1, extra):
        mf, pins, rq = [], {}, []
        for ks in range(k0, k1):
            pins[3*(ks-k0)-1] = [("wait", [], [f"v{ks}"])]
            for j in range(3):
                d = vr(UC+4*j, 4)
                mf.append(f"v_mfma_f32_16x16x32_bf16 {d}, {vr(VR+4*(ks % 4), 4)}, {ar(12*ks+4*j, 4)}, {d if ks else 0}")
            if ks + 3 < 20: rq.append((3*(ks-k0), 3*(ks-k0)+1, vread(ks+3)))
        left, rest = sc.run(mf, pins, [rq, spread(extra, 1, len(mf) - 1, 2)], [])
        sc.flush(left)
    ucsteps(0, UCA, xrd + vec_reads(GA, 0, "eo") + vec_reads(S2, 1, "eo"))
    emit(("wait", ["o"], []))
    signal(0, 34, otouch)
    st_("sig0")
    ucsteps(UCA, 20, [])
    k(late2)
    emit(poll_issue(0, VP1, "s97", FAST*ATTQ))
    emit(("wait", [], ["xr", "eo"]))
    for j in range(10): k(f"v_lshlrev_b32 v{T0+2*j}, 16, v{XR+j}\nv_and_b32 v{T0+2*j+1}, s45, v{XR+j}")
    for ks in range(3):
        for t in range(5): emit(bread(ks, t))
    for j in range(3): k(f"v_cndmask_b32 v{VR+j}, 0, v{UC+4*j}, s[56:57]")
    for j in range(3): k(f"v_cvt_pk_bf16_f32 v{EXS+2*j}, v{VR+j}, v{VR+j}")
    for j in range(3): k(f"v_and_b32 v{VR+4+j}, s45, v{EXS+2*j}")
    for j in range(3): k(f"v_sub_f32 v{VR+j}, v{VR+j}, v{VR+4+j}")
    for j in range(3): k(f"v_cvt_pk_bf16_f32 v{EXS+2*j+1}, v{VR+j}, v{VR+j}")
    poll_check(0, VP1, "s97", FAST*ATTQ)
    st_("poll0")
    def aload(ks):
        if ks % 5 < 4: b = [("vm", f"A{ks}", f"buffer_load_dwordx4 {vr(A0+4*ks, 4)}, v{VA}, {WS}, s33 offen offset:{2048*(ks & 1)} sc1")]
        else: b = [("vm", f"A{ks}", f"buffer_load_dwordx2 {vr(A0+4*ks+2*jj, 2)}, v{VAT}, {WS}, s33 offen offset:{2048*(ks & 1) + 256*jj} sc1") for jj in range(2)]
        return b + (["s_add_u32 s33, s33, 4096"] if ks & 1 else [])
    NA0 = env("NA0", 12)
    for ks in range(NA0): E(aload(ks))
    n0 = len(k.L)
    mf, pins, rq = [], {}, []
    for ks in range(20):
        pins[5*ks-1] = [("wait", [f"A{ks}"], [f"b{ks}_4"])]
        for t in range(5):
            d = vr(X2+4*t, 4)
            mf.append(f"v_mfma_f32_16x16x32_bf16 {d}, {vr(BR+20*(ks % 3)+4*t, 4)}, {vr(A0+4*ks, 4)}, {d if ks else 0}")
            if ks + 3 < 20: rq.append((5*ks+t, 5*ks+t+4, bread(ks+3, t)))
    left, _ = sc.run(mf, pins, [rq, spread([aload(ks) for ks in range(NA0, 20)], 0, 5*(20-NA0), 2)], [])
    sc.flush(left)
    report("wo", n0)
    st_("wo")
    P = lambda r, j: f"v[{r+2*j}:{r+2*j+1}]"
    Y = GA; SU, SQ = XR, XR+2
    W = [f"v_mov_b32 v{EXW+i}, v{EXS+i}" for i in range(6)]
    W += [f"v_pk_fma_f32 {P(X2,j)}, {P(X2,j)}, {P(GA,j)}, {P(T0,j)}" for j in range(10)]
    W += [f"v_pk_mul_f32 {P(T0,j)}, {P(X2,j)}, {P(S2,j)}" for j in range(10)]
    for j in (8, 9): W += [f"v_cvt_pk_bf16_f32 v{Y+j}, v{T0+2*j}, v{T0+2*j+1}", f"v_cvt_pk_bf16_f32 v{Y+j+2}, v{T0+2*j}, v{T0+2*j+1}"]
    for pr in range(2):
        W += [f"v_cvt_pk_bf16_f32 v{Y+j}, v{T0+2*j}, v{T0+2*j+1}" for j in range(4*pr, 4*pr+4)]
        W.append(("vm", "y2", f"buffer_store_dwordx4 v[{Y+4*pr}:{Y+4*pr+3}], v{VA}, {WS}, s46 offen offset:{2048*pr} sc1"))
    W += [f"v_permlane16_swap_b32 v{Y+8}, v{Y+10}", f"v_permlane16_swap_b32 v{Y+9}, v{Y+11}",
          f"v_and_b32 v{T0}, 0x100, v{VT2}", f"v_add_u32 v{T0}, v{T0}, v{VT2}",
          ("vm", "y2", f"buffer_store_dwordx4 v[{Y+8}:{Y+11}], v{T0}, {WS}, s47 offen sc1"),
          f"v_pk_add_f32 {P(SU,0)}, {P(X2,0)}, {P(X2,1)}", f"v_pk_mul_f32 {P(SQ,0)}, {P(X2,0)}, {P(X2,0)}"]
    for j in range(1, 10):
        if j > 1: W.append(f"v_pk_add_f32 {P(SU,0)}, {P(SU,0)}, {P(X2,j)}")
        W.append(f"v_pk_fma_f32 {P(SQ,0)}, {P(X2,j)}, {P(X2,j)}, {P(SQ,0)}")
    W += [f"v_add_f32 v{SU}, v{SU}, v{SU+1}", f"v_add_f32 v{SU+1}, v{SQ}, v{SQ+1}", "s_nop 1",
          f"v_permlane32_swap_b32 v{SU}, v{SU+1}", f"v_add_f32 v{SQ}, v{SU}, v{SU+1}", f"v_add_f32 v{SQ+1}, v{SU}, v{SU+1}", "s_nop 1",
          f"v_permlane16_swap_b32 v{SQ}, v{SQ+1}", f"v_add_f32 v{SQ}, v{SQ}, v{SQ+1}",
          ("vm", "y2", f"buffer_store_dword v{SQ}, v{VST}, {WS}, s48 offen sc1")]
    sc.flush(W)
    st_("west")
    k(f"""
    {vpc(VPC, VSG)}
    v_lshrrev_b32 v{TMP}, 4, v{VL}
    v_min_u32 v{VTH}, 11, v{TMP}
    v_lshlrev_b32 v{VTH}, 7, v{VTH}
    v_cmp_lt_u32 vcc, 19, v{TMP}
    v_lshrrev_b32 v{TMP+1}, 1, v{TMP}
    v_and_b32 v{TMP}, 1, v{TMP}
    v_lshlrev_b32 v{TMP}, 7, v{TMP}
    v_lshl_add_u32 v{TMP}, v{TMP+1}, 9, v{TMP}
    s_sub_u32 s36, s47, 4096
    v_add_u32 v{TMP}, s36, v{TMP}
    v_mov_b32 v{TMP+1}, s48
    v_cndmask_b32 v{TMP+2}, v{TMP}, v{TMP+1}, vcc
    v_add_u32 v{VLA2}, {2*SLOT}, v{VLA}
    v_and_b32 v{VCM}, 0x1ff, v{VT2}
    v_add_u32 v{VCM}, {CONA}, v{VCM}
    v_bfe_u32 v{TMP}, v{VL}, 8, 1
    v_lshlrev_b32 v{TMP}, 10, v{TMP}
    v_lshl_add_u32 v{TMP}, v{VFL}, 1, v{TMP}
    v_and_b32 v{TMP+1}, 0x200, v{VL}
    v_add_u32 v{TMP}, v{TMP}, v{TMP+1}
    """)
    emit(("wait", ["y2"], []))
    signal(1, touch=[("vm", "tch", f"buffer_load_dword v{VSL}, v{TMP+2}, {WS}, 0 offen sc1")])
    st_("sig1")
    k(late3)
    for n in range(WDN[0]): E(wd_load(n))
    for i in range(DLY1): k("s_nop 15")
    emit(poll_issue(1))
    poll_check(1)
    st_("poll1")
    def dma0(j):
        return [[f"s_add_u32 m0, s51, {8192*j}", "s_nop 0", ("vm", f"p0_{j}", f"buffer_load_dwordx4 v{VL}, {WS}, s52 offen sc1 lds")],
                [("vm", f"p0_{j}", f"buffer_load_dwordx4 v{VL}, {WS}, s52 offen offset:1024 sc1 lds"), "s_add_u32 s52, s52, 8192"]]
    def dmap(p):
        g = []
        for i in range(10):
            b = [("vm", f"p{p}", f"buffer_load_dwordx4 v{VL}, {WS}, s50 offen offset:{1024*(i & 3)} sc1 lds")]
            if i & 3 == 0: g.append([f"s_add_u32 m0, s53, {(p % 3)*SLOT + 1024*i}", f"s_add_u32 s50, s50, {4096 if i else 40960 - 8192}"])
            g.append(b)
        return g
    SJ = OUT
    for j in range(5):
        for b in dma0(j): E(b)
        if j == 1:
            for i in range(4): emit(("vm", "stat", f"buffer_load_dwordx2 v[{SJ+2*i}:{SJ+2*i+1}], v{TMP}, {WS}, s54 offen offset:{128*i} sc1"))
    C0 = -2*LOG2E*0.7978845608028654
    def stats_ops():
        t = TMP
        L = [("wait", ["stat"], [])]
        for i in (1, 2, 3): L += [f"v_add_f32 v{SJ}, v{SJ}, v{SJ+2*i}", f"v_add_f32 v{SJ+1}, v{SJ+1}, v{SJ+2*i+1}"]
        L += [f"v_mov_b32 v{SJ+2}, v{SJ}", f"v_mov_b32 v{SJ+3}, v{SJ+1}",
              f"v_and_b32 v{t+8}, 0x1f0, v{VL}", f"s_lshl_b32 s36, s29, 9",
              f"v_permlane32_swap_b32 v{SJ}, v{SJ+2}", f"v_permlane32_swap_b32 v{SJ+1}, v{SJ+3}",
              f"v_add_f32 v{SJ}, v{SJ}, v{SJ+2}", f"v_add_f32 v{SJ+1}, v{SJ+1}, v{SJ+3}",
              f"v_mul_f32 v{SJ}, {f32(-1.0/640)}, v{SJ}",
              f"v_mul_f32 v{SJ+1}, {f32(1.0/640)}, v{SJ+1}",
              f"v_fma_f32 v{SJ+1}, -v{SJ}, v{SJ}, v{SJ+1}",
              f"v_max_f32 v{SJ+1}, 0, v{SJ+1}",
              f"v_add_f32 v{t+2}, {f32(1e-5)}, v{SJ+1}",
              f"v_rsq_f32 v{SJ+2}, v{t+2}",
              f"v_add_u32 v{t+8}, s36, v{t+8}",
              f"v_mul_f32 v{SJ+1}, v{t+2}, v{SJ+2}",
              f"v_mul_f32 v{t}, {f32(C0)}, v{SJ+2}",
              f"v_mul_f32 v{SJ+3}, v{SJ+2}, v{SJ+2}",
              f"v_mul_f32 v{SJ+3}, {f32(0.044715)}, v{SJ+3}",
              f"v_mul_f32 v{t+1}, v{SJ+3}, v{t}",
              f"v_cvt_pk_bf16_f32 v{SJ+2}, v{SJ}, v{SJ+1}",
              ("lg", "cw", f"ds_write_b128 v{t+8}, v[{t}:{t+3}] offset:{CONA - 65536*(CONA//65536)}"),
              f"v_lshlrev_b32 v{SJ+4}, 16, v{SJ+2}", f"v_and_b32 v{SJ+5}, s45, v{SJ+2}",
              f"v_sub_f32 v{SJ+6}, v{SJ}, v{SJ+4}", f"v_sub_f32 v{SJ+7}, v{SJ+1}, v{SJ+5}",
              f"v_cvt_pk_bf16_f32 v{t+4}, v{SJ+4}, v{SJ+6}", f"v_cvt_pk_bf16_f32 v{t+6}, v{SJ+5}, v{SJ+7}",
              f"v_cndmask_b32 v{t+4}, 0, v{t+4}, s[56:57]", f"v_cndmask_b32 v{t+6}, 0, v{t+6}, s[56:57]",
              f"v_lshrrev_b32 v{t+9}, 5, v{VL}", f"v_and_b32 v{t+9}, 16, v{t+9}",
              f"v_mov_b32 v{t+5}, v{t+4}", f"v_mov_b32 v{t+7}, v{t+6}",
              f"v_lshl_add_u32 v{t+9}, v{t+8}, 1, v{t+9}",
              f"v_subrev_u32 v{t+9}, {65536*(CONA//65536)}, v{t+9}",
              ("lg", "cw", f"ds_write_b128 v{t+9}, v[{t+4}:{t+7}] offset:{CONB - 65536*(CONA//65536)}")]
        i = L.index(f"s_lshl_b32 s36, s29, 9"); L.insert(i+1, f"s_add_u32 s36, s36, {65536*(CONA//65536)}")
        return [[x] for x in L]
    def con_reads(p):
        return [[("lg", f"c{p}", f"ds_read_b128 {vr(CON+4*t, 4)}, v{VCA} offset:{512*p + 256*t}")] for t in range(2)] + \
               [[("lg", f"c{p}", f"ds_read_b128 {vr(CON+8, 4)}, v{VCM} offset:{512*p}")]]
    def exa_reads(p):
        return [("lg", f"x{p}", f"ds_read_b64 {vr(EXA+2*t, 2)}, v{VCB} offset:{1024*p + 512*t}") for t in range(2)]
    def gelu_ops(p, packed=False):
        e = ACC + 24*(p & 1)
        L = [("wait", [], [f"c{p}"])]
        grp = [(e, e+4, CON, TMP, OUT), (e+12, e+16, CON+4, TMP+4, OUT+2), (e+8, e+20, CON+8, TMP+8, OUT+4)]
        sw = [f"v_permlane32_swap_b32 v{e+8+i}, v{e+20+i}" for i in range(4)]
        if packed:
            L += sw
            PP = lambda f: [f(g, u, c, t, j) for (g, u, c, t, o) in grp for j in range(2)]
            S1 = lambda f: [f(t+i) for (g, u, c, t, o) in grp for i in range(4)]
            L += PP(lambda g, u, c, t, j: f"v_pk_mul_f32 {P(t,j)}, {P(g,j)}, {P(g,j)}")
            L += PP(lambda g, u, c, t, j: f"v_pk_fma_f32 {P(t,j)}, {P(t,j)}, {P(c,0)}, {P(c,0)} op_sel:[0,1,0] op_sel_hi:[1,1,0]")
            L += PP(lambda g, u, c, t, j: f"v_pk_mul_f32 {P(t,j)}, {P(t,j)}, {P(g,j)}")
            L += S1(lambda r: f"v_exp_f32 v{r}, v{r}")
            L += PP(lambda g, u, c, t, j: f"v_pk_fma_f32 {P(t,j)}, {P(t,j)}, {P(c,1)}, {P(c,1)} op_sel_hi:[1,0,0]")
            L += S1(lambda r: f"v_rcp_f32 v{r}, v{r}")
            L += PP(lambda g, u, c, t, j: f"v_pk_mul_f32 {P(u,j)}, {P(u,j)}, {P(g,j)}")
            L += PP(lambda g, u, c, t, j: f"v_pk_mul_f32 {P(u,j)}, {P(u,j)}, {P(t,j)}")
        for n, (g, u, c, t, o) in enumerate(grp):
            if not packed:
                if n == 2: L += sw
                R = range(4)
                L += [f"v_mul_f32 v{t+i}, v{g+i}, v{g+i}" for i in R]
                L += [f"v_fma_f32 v{t+i}, v{t+i}, v{c+1}, v{c}" for i in R]
                L += [f"v_mul_f32 v{t+i}, v{t+i}, v{g+i}" for i in R]
                for i in R: L += [f"v_exp_f32 v{t+i}, v{t+i}", f"v_mul_f32 v{u+i}, v{u+i}, v{g+i}"]
                L += [f"v_fma_f32 v{t+i}, v{t+i}, v{c+2}, v{c+2}" for i in R]
                L += [f"v_rcp_f32 v{t+i}, v{t+i}" for i in R]
                L += [f"v_mul_f32 v{u+i}, v{u+i}, v{t+i}" for i in R]
            L += [f"v_cvt_pk_bf16_f32 v{o+j}, v{u+2*j}, v{u+2*j+1}" for j in range(2)]
            if n == 2: L += [f"v_cvt_pk_bf16_f32 v{o+2+j}, v{u+2*j}, v{u+2*j+1}" for j in range(2)]
        L += [f"v_permlane16_swap_b32 v{OUT}, v{OUT+2}", f"v_permlane16_swap_b32 v{OUT+1}, v{OUT+3}",
              ("vm", f"h{p}", f"buffer_store_dwordx4 {vr(OUT, 4)}, v{VL}, {WS}, s55 offen sc1"),
              f"v_permlane16_swap_b32 v{OUT+4}, v{OUT+6}", f"v_permlane16_swap_b32 v{OUT+5}, v{OUT+7}",
              ("vm", f"h{p}", f"buffer_store_dwordx4 {vr(OUT+4, 4)}, v{VT2}, {WS}, s55 offen offset:1024 sc1"),
              "s_add_u32 s55, s55, 98304"]
        return [[x] for x in L]
    def aread(gk, t):
        p, ks = divmod(gk, 20)
        return ("lg", f"a{gk}", f"ds_read_b128 {vr(AR+8*(gk % 3)+4*t, 4)}, v{(VLA, VLA+1, VLA2)[p % 3]} offset:{2048*ks + 256*t}")
    emit(("wait", ["p0_0"], [])); k("s_barrier")
    st_("y2")
    for gk in range(2):
        for t in range(2): emit(aread(gk, t))
    for p in range(4):
        n0 = len(k.L)
        mf, pins, rq = [], {}, []
        for ks in range(21):
            gk = 20*p + ks
            pin = []
            if p == 0 and ks in (2, 6, 10, 14): pin += [("wait", [f"p0_{(ks+2)//4}"], []), "s_barrier"]
            if ks == 18 and p < 2: pin += [("wait", [f"p{p+1}"], ["cw"]), "s_barrier"]
            if ks == 18 and p == 2: pin += [("wait", ["p3", "h0"], []), ("call", lambda: signal(2, touch=htouch()))]
            if ks == SIGK and p == 3: pin += [("wait", ["h1"], []), ("call", lambda: (signal(3, touch=htouch()), st_("p3a")))]
            if ks == P2C and p == 3: pin += [("call", lambda: (poll_check(2), st_("p3b")))]
            if pin: pins[6*ks-2] = pin
            pins[6*ks-1] = [("wait", [], [f"a{gk}" if ks < 20 else f"x{p}"])]
            for t in range(2):
                for j in range(3):
                    d = vr(ACC + 24*(p & 1) + 12*t + 4*j, 4)
                    if ks < 20: mf.append(f"v_mfma_f32_16x16x32_bf16 {d}, {ar(12*ks+4*j, 4)}, {vr(AR+8*(gk % 3)+4*t, 4)}, {d if ks else 0}")
                    else: mf.append(f"v_mfma_f32_16x16x16_bf16 {d}, {vr(EXW+2*j, 2)}, {vr(EXA+2*t, 2)}, {d}")
            if ks == 18: rq += [(6*ks, 6*ks+2+t, exa_reads(p)[t]) for t in range(2)]
            if ks < 20 and gk + 2 < 80: rq += [(6*ks, 6*ks+3+t, aread(gk+2, t)) for t in range(2)]
        wds = [wd_load(n) for n in range(WDN[p], WDN[p+1])]
        work = [b[0] for b in (stats_ops() if p == 0 else gelu_ops(p-1) + con_reads(p))]
        if p == 0:
            rq += [(6*19+2, 6*20, b[0]) for b in con_reads(0)]
            pins[20] = [work.pop(0)]
            left, rest = sc.run(mf[:21], pins, [rq[:8], []], [])
            pins = {g-21: v for g, v in pins.items() if g >= 21}
            rq = [(0, 1, x) for x in left] + [(a-21, b-21, x) for a, b, x in rq[8:]]
            left, rest = sc.run(mf[21:], pins, [rq, spread(dmap(1), 0, DM1) + spread(wds, DM1 + 20, 104)], work)
        elif p < 3:
            left, rest = sc.run(mf, pins, [rq, spread(dmap(p+1), 0, DM2) + spread(wds, DM2 + 5, 124)], work)
        else:
            left, rest = sc.run(mf, pins, [rq, spread(wds, 8, WDE), [(6*P2I, 6*P2I+3, poll_issue(2))]], work)
        sc.flush(left + rest)
        report(f"pair{p}", n0)
        st_(f"p{p}")
    k(f"""
    s_mul_i32 s36, s29, 5120
    v_add_u32 v{VB2}, s36, v{VL}
    s_mul_i32 s36, s29, 20480
    v_add_u32 v{VCA}, s36, v{VL}
    v_add_u32 v{VCB}, 40960, v{VB2}
    """)
    AD = 140; DA = 36; GB = 120
    def dload(t, ks):
        g = [("vm", f"d{t}_{ks}", f"buffer_load_dwordx4 {ar(AD+48*(t & 1)+4*ks, 4)}, v{VA}, {WS}, s58 offen offset:{2048*(ks & 1)} sc1")]
        if ks & 1: g.append(f"s_add_u32 s58, s58, {4096 if ks < 11 else 98304 - 5*4096}")
        return g
    tail = [b[0] for b in gelu_ops(3, packed=True)]
    tl = [dload(0, ks) for ks in range(12)]
    for n in range(WDN[4], 60): tl.insert(min(len(tl), n//5 + n - WDN[4]), wd_load(n))
    for b in tl[:2]: E(b)
    k("s_nop 2")
    rest = pace(tail[:P3I], tl[2:NT0], env("TPACE", 40)) + tl[NT0:]
    emit(poll_issue(3))
    sc.flush(tail[P3I:])
    st_("tail")
    emit(("wait", ["h2"], []))
    signal(4, touch=htouch())
    st_("sig4")
    for b in rest: E(b)
    for b in vec_reads(GB, 2, "gb"): E(b)
    poll_check(3)
    st_("poll3")
    def rwrite(t): return [("lg", "rw", f"ds_write_b128 v{(VB2, VCB)[t >> 1]}, {vr(DA+20*t+4*j, 4)} offset:{20480*(t & 1) + 1024*j}") for j in range(5)]
    def dtile(t, extra_pins, qs):
        mf, pins = [], {}
        for ks in range(12):
            pins[5*ks-1] = [("wait", [f"d{t}_{ks}", f"wd{ks}"], [])]
            if ks in extra_pins: pins[5*ks-2] = extra_pins[ks]
            for j in range(5):
                d = vr(DA + 20*t + 4*j, 4)
                mf.append(f"v_mfma_f32_16x16x32_bf16 {d}, {wd_reg(5*ks+j)}, {ar(AD+48*(t & 1)+4*ks, 4)}, {d if ks else 0}")
        left, _ = sc.run(mf, pins, qs, [])
        sc.flush(left)
    now = lambda items, a=0: [(a, 1000, x) for x in items]
    flat = lambda t, a, b: [x for ks in range(a, b) for x in dload(t, ks)]
    dtile(0, {S5K: [("call", lambda: st_("sig5a")), ("wait", ["h3"], []), ("call", lambda: (signal(5, touch=htouch()), st_("sig5")))]}, [now(flat(1, 0, 12)), [(5*P4I, 5*P4I+2, poll_issue(4))]])
    st_("t0")
    poll_check(4)
    st_("poll4")
    dtile(1, {}, [now(flat(2, 0, P5N) + [poll_issue(5)] + flat(2, P5N, 12)), now(rwrite(0), 20)])
    st_("t1")
    dtile(2, {P5C: [("call", lambda: (poll_check(5), st_("poll5")))]}, [now(flat(3, 0, 12), 5*P5C), now(rwrite(1), 4)])
    st_("t2")
    dtile(3, {}, [now(rwrite(2), 4)])
    st_("t3")
    sc.flush(rwrite(3))
    emit(("wait", [], ["rw", "gb"])); k("s_barrier")
    R = WD0
    for s in range(4):
        for j in range(5): emit(("lg", f"r{s}", f"ds_read_b128 {vr(R+20*s+4*j, 4)}, v{VCA} offset:{5120*s + 1024*j}"))
    for s in range(1, 4):
        emit(("wait", [], [f"r{s}"]))
        for j in range(10): k(f"v_pk_add_f32 {P(R,j)}, {P(R,j)}, {P(R+20*s,j)}")
    for j in range(10): k(f"v_pk_fma_f32 {P(X2,j)}, {P(R,j)}, {P(GB,j)}, {P(X2,j)}")
    for j in range(10): k(f"v_cvt_pk_bf16_f32 v{DA+j}, v{X2+2*j}, v{X2+2*j+1}")
    for pr in range(2): k(f"buffer_store_dwordx4 v[{DA+4*pr}:{DA+4*pr+3}], v{VX}, s[24:27], s37 offen offset:{64*pr}")
    k(f"buffer_store_dwordx2 v[{DA+8}:{DA+9}], v{VX4}, s[24:27], s37 offen offset:128")
    stamp_flush(k, 2, sn[0]+2, 20)
    k(f"{Lend}:\ns_endpgm")
    for x in slow: k(x)
    c = S[2]; QF = Q[0]; f = FR
    for i in range(2):
        L1, L2 = k.label("p1"), k.label("p2")
        k(f"""
        {Lfb[i]}:
        s_lshr_b32 s36, s29, 1
        s_mul_i32 s36, s36, {2*QT}
        s_add_u32 s36, s36, s10
        buffer_load_dwordx4 {vr(QF, 4)}, v{VL}, {WS}, s36 offen offset:{QT*i}
        buffer_load_dwordx2 {vr(QF+4, 2)}, v27, {WS}, s36 offen offset:{QT*i + 1024}
        v_mov_b32 v22, 0xff800000
        s_mov_b32 s3, s11
        s_add_u32 s36, s11, {64*KVT}
        s_waitcnt vmcnt(0)
        v_cndmask_b32 v{QF+4}, 0, v{QF+4}, s[56:57]
        v_cndmask_b32 v{QF+5}, 0, v{QF+5}, s[56:57]
        {L1}:
        {kvload(0)[0][2]}
        {kvload(0)[1][2]}
        s_waitcnt vmcnt(0)
        {qa(c, f, QF)}
        {qb(c, f+12, QF)}
        s_nop 11
        """)
        for x in rowmax(c, 22, False): k(x)
        k(f"""
        s_add_u32 s3, s3, {KVT}
        s_cmp_lt_u32 s3, s36
        s_cbranch_scc1 {L1}
        v_mov_b32 v23, v22
        s_nop 1
        v_permlane32_swap_b32 v23, v22
        v_max_f32 v22, v23, v22
        v_sub_f32 v23, 0, v22
        v_and_b32 v24, s45, v23
        v_sub_f32 v23, v23, v24
        v_and_b32 v25, s45, v23
        v_sub_f32 v23, v23, v25
        v_lshrrev_b32 v24, 16, v24
        v_or_b32 v24, v24, v25
        v_lshrrev_b32 v23, 16, v23
        v_cndmask_b32 v{QF+4}, v24, v{QF+4}, s[56:57]
        v_cndmask_b32 v{QF+5}, v23, v{QF+5}, s[56:57]
        """)
        for j in range(16): k(f"v_mov_b32 v{F[i]+j}, 0")
        k(f"""
        s_mov_b32 s3, s11
        {L2}:
        {kvload(0)[0][2]}
        {kvload(0)[1][2]}
        {kvload(0)[2][2]}
        {kvload(0)[3][2]}
        s_waitcnt vmcnt(0)
        {qa(c, f, QF)}
        {qb(c, f+12, QF)}
        s_nop 11
        """)
        for j in range(16): k(f"v_exp_f32 v{c+j}, v{c+j}")
        k(f"""
        s_nop 1
        {pv(F[i], f+4, c)}
        {pv(F[i], f+8, c+8)}
        s_add_u32 s3, s3, {KVT}
        s_cmp_lt_u32 s3, s36
        s_cbranch_scc1 {L2}
        s_nop 11
        v_mov_b32 v{18+2*i}, v{F[i]+8}
        v_mov_b32 v{19+2*i}, v{F[i]+8}
        s_nop 1
        v_permlane32_swap_b32 v{18+2*i}, v{19+2*i}
        s_branch {Lrt[i]}
        """)
    return k, dict(grid=256, block=256, lds=LDS, vgpr=512, accum=256, sgpr=102)
```

```python
from asm import *
NAME = "adaLN_cond__softmax_full_mha__glu_gated_geglu__prompt"
A_X, A_WQKV, A_WO, A_BX, A_WG, A_WU, A_WD, A_C, A_WMOD, A_OUT, A_DBG, A_WS = [8*i for i in range(12)]
WS_MOD  = 0
WS_MODH = 0x4000
WS_FLAG = 0x40000
WS_UC   = 0x4000
WS_STAT = 0x10000
WS_XH   = 0x80000
WS_Q    = 0x300000
WS_KV   = 0x580000
WS_O    = 0xAC0000
WS_X2   = 0xD40000
WS_Y2   = 0xFC0000
WS_HH   = 0x1240000
WS_PWO  = 0x1840000
WS_PWD  = WS_PWO + 640*640*2
WS_PWG  = WS_PWD + 1536*640*2
WS_TS   = 0x1F00000
WS_END  = 0x2000000
KVT = 2688
QT = 1280
LOG2E = 1.4426950408889634
import struct
def f32(x): return "0x%08x" % struct.unpack("<I", struct.pack("<f", x))[0]

def srd(k, d, base, size):
    k(f"s_mov_b32 s{d}, s{base}\ns_mov_b32 s{d+1}, s{base+1}\ns_mov_b32 s{d+2}, {hex(size)}\ns_mov_b32 s{d+3}, 0x20000")

def kernel_text(k, vgpr, sgpr=96, accum=None):
    if DIAG: sgpr = 102
    if accum is None: accum = min(256, (vgpr + 3)//4*4)
    bad = check(k.L, k.name)
    assert bad == 0, f"{bad} hazards in {k.name}"
    code = f""".text
.globl {k.name}_kernel
.p2align 8
.type {k.name}_kernel,@function
{k.name}_kernel:
{k.text()}
"""
    kd = f""".p2align 6
.amdhsa_kernel {k.name}_kernel
  .amdhsa_next_free_vgpr {vgpr}
  .amdhsa_next_free_sgpr {sgpr}
  .amdhsa_accum_offset {accum}
  .amdhsa_group_segment_fixed_size 0
  .amdhsa_kernarg_size 96
  .amdhsa_user_sgpr_count 2
  .amdhsa_user_sgpr_kernarg_segment_ptr 1
  .amdhsa_system_sgpr_workgroup_id_x 1
.end_amdhsa_kernel
"""
    return code, kd

def code_prefetch(k, target, nkb, sp, va, vd):
    L = k.label("pc")
    k(f"""
    s_getpc_b64 s[{sp}:{sp+1}]
    {L}:
    s_add_u32 s{sp}, s{sp}, {target}-{L}
    s_addc_u32 s{sp+1}, s{sp+1}, 0
    v_and_b32 v{va}, 63, v0
    v_lshlrev_b32 v{va}, 7, v{va}
    """)
    for i in range((nkb+7)//8):
        k(f"v_min_u32 v{va}, L_text_end-{target}-4, v{va}")
        k(f"global_load_dword v{vd}, v{va}, s[{sp}:{sp+1}]")
        if i < (nkb+7)//8 - 1: k(f"v_add_u32 v{va}, 8192, v{va}")

DIAG = False
def stamp(k, i):
    if DIAG: k(f"s_memrealtime s[98:99]\ns_memtime s[100:101]\ns_waitcnt lgkmcnt(0)\ns_mov_b32 s{80+i}, s98\ns_mov_b32 s{64+i}, s100")
def stamp_flush(k, kid, n, ws_srd):
    if not DIAG: return
    stamp(k, n-1)
    k("s_mov_b64 exec, 1")
    k(f"s_lshl_b32 s95, s2, 3\ns_add_u32 s95, s95, s79\ns_lshl_b32 s95, s95, 7\ns_add_u32 s95, s95, {WS_TS + kid*0x40000}")
    k("v_mov_b32 v1, 0")
    for i in range(n):
        k(f"v_mov_b32 v2, s{80+i}\nbuffer_store_dword v2, v1, s[{ws_srd}:{ws_srd+3}], s95 offen offset:{4*i}")
        k(f"v_mov_b32 v2, s{64+i}\nbuffer_store_dword v2, v1, s[{ws_srd}:{ws_srd+3}], s95 offen offset:{64+4*i}")
def stamp_init(k):
    if DIAG:
        stamp(k, 0)
        k("v_lshrrev_b32 v1, 6, v0\ns_nop 0\nv_readfirstlane_b32 s79, v1")
```

```python
from common import *
import common
def dpp_sum16(k, regs_, steps=(8, 4, 2, 1)):
    for st in steps:
        if len(regs_) < 3: k("s_nop 1")
        for r in regs_:
            k(f"v_add_f32_dpp v{r}, v{r}, v{r} row_ror:{st} row_mask:0xf bank_mask:0xf")

def gemv_reduce_rows(k, acc, n):
    pass

def k1():
    k = K("prep")
    Lg, Lend = k.label("gemv"), k.label("end")
    stamp_init(k)
    k(f"""
    s_cmp_ge_u32 s2, 248
    s_cbranch_scc1 {Lend}
    s_load_dwordx2 s[4:5], s[0:1], {A_X}
    s_load_dwordx4 s[8:11], s[0:1], {A_C}
    s_load_dwordx2 s[6:7], s[0:1], {A_WS}
    s_cmp_ge_u32 s2, 128
    s_cbranch_scc1 {Lg}
    """)
    k(f"""
    s_and_b32 s12, s2, 1
    s_lshl_b32 s12, s12, 10
    s_lshr_b32 s13, s2, 1
    s_lshl_b32 s13, s13, 4
    s_add_u32 s12, s12, s13
    v_lshrrev_b32 v1, 4, v0
    v_add_u32 v1, s12, v1              ; row
    v_and_b32 v2, 15, v0               ; li
    v_mul_u32_u24 v3, 1280, v1
    v_lshl_add_u32 v3, v2, 4, v3
    s_waitcnt lgkmcnt(0)
    """)
    srd(k, 16, 4, 2048*1280)
    srd(k, 20, 6, WS_END)
    Lz = k.label("noz")
    k(f"""
    s_cmp_lg_u32 s2, 0
    s_cbranch_scc1 {Lz}
    v_mov_b32 v8, 0
    v_lshlrev_b32 v4, 8, v0
    s_mov_b32 s13, {WS_FLAG}
    buffer_store_dword v8, v4, s[20:23], s13 offen
    buffer_store_dword v8, v4, s[20:23], s13 offen offset:128
    s_waitcnt vmcnt(0)
    {Lz}:
    """)
    for i in range(5):
        k(f"buffer_load_dwordx4 v[{8+4*i}:{11+4*i}], v3, s[16:19], 0 offen offset:{256*i}")
    k(f"""
    v_lshrrev_b32 v4, 5, v1
    v_mul_u32_u24 v4, 40, v4
    v_lshrrev_b32 v5, 1, v2
    v_add_u32 v4, v4, v5
    v_lshlrev_b32 v4, 10, v4
    v_and_b32 v5, 1, v2
    v_lshlrev_b32 v5, 5, v5
    v_and_b32 v6, 31, v1
    v_add_u32 v5, v5, v6
    v_lshl_add_u32 v4, v5, 4, v4
    s_mov_b32 s14, 0xffff0000
    """)
    X = 32
    for i in range(5):
        k(f"s_waitcnt vmcnt({4-i})")
        for j in range(4):
            r = 8+4*i+j
            k(f"v_lshlrev_b32 v{X+8*i+2*j}, 16, v{r}\nv_and_b32 v{X+8*i+2*j+1}, s14, v{r}")
    k(f"v_pk_add_f32 v[6:7], v[{X}:{X+1}], v[{X+2}:{X+3}]")
    for j in range(2, 20):
        k(f"v_pk_add_f32 v[6:7], v[6:7], v[{X+2*j}:{X+2*j+1}]")
    k("v_add_f32 v6, v6, v7")
    dpp_sum16(k, [6])
    k(f"v_mul_f32 v6, {f32(-1.0/640)}, v6")
    for j in range(20):
        k(f"v_pk_add_f32 v[{X+2*j}:{X+2*j+1}], v[{X+2*j}:{X+2*j+1}], v[6:7] op_sel_hi:[1,0]")
    k(f"v_pk_mul_f32 v[6:7], v[{X}:{X+1}], v[{X}:{X+1}]")
    for j in range(1, 20):
        k(f"v_pk_fma_f32 v[6:7], v[{X+2*j}:{X+2*j+1}], v[{X+2*j}:{X+2*j+1}], v[6:7]")
    k("v_add_f32 v6, v6, v7")
    dpp_sum16(k, [6])
    k(f"""
    v_mov_b32 v7, {f32(1e-5)}
    v_fmac_f32 v7, {f32(1.0/640)}, v6
    v_rsq_f32 v6, v7
    s_mov_b32 s15, {WS_XH}
    """)
    for i in range(5):
        for j in range(4):
            a = X+8*i+2*j
            k(f"v_pk_mul_f32 v[{a}:{a+1}], v[{a}:{a+1}], v[6:7] op_sel_hi:[1,0]")
        for j in range(4):
            a = X+8*i+2*j
            k(f"v_cvt_pk_bf16_f32 v{8+4*i+j}, v{a}, v{a+1}")
        k(f"buffer_store_dwordx4 v[{8+4*i}:{11+4*i}], v4, s[20:23], s15 offen")
        if i < 4: k("s_add_u32 s15, s15, 8192")
    stamp_flush(k, 0, 2, 20)
    k("s_endpgm")
    k(f"{Lg}:")
    k(f"""
    s_sub_u32 s12, s2, 128
    s_and_b32 s13, s12, 7
    s_mul_i32 s13, s13, 15
    s_lshr_b32 s12, s12, 3
    s_add_u32 s12, s12, s13
    s_lshl_b32 s13, s12, 6
    v_lshrrev_b32 v1, 2, v0
    v_and_b32 v2, 3, v0
    v_mul_u32_u24 v3, 20, v1
    s_mov_b32 s14, 76800
    v_mul_lo_u32 v4, s14, v1
    v_lshl_add_u32 v4, v2, 4, v4
    s_waitcnt lgkmcnt(0)
    """)
    srd(k, 16, 8, 1280)
    srd(k, 24, 10, 640*7680)
    srd(k, 20, 6, WS_END)
    k("buffer_load_dwordx4 v[8:11], v3, s[16:19], 0 offen\nbuffer_load_dword v12, v3, s[16:19], 0 offen offset:16")
    W = 32
    for i in range(10):
        k(f"buffer_load_dwordx4 v[{W+4*i}:{W+3+4*i}], v4, s[24:27], s13 offen")
        if i < 9: k("s_add_u32 s13, s13, 7680")
    k("s_mov_b32 s14, 0xffff0000\ns_waitcnt vmcnt(10)")
    Aa = 16
    for j in range(5):
        k(f"v_lshlrev_b32 v{Aa+2*j}, 16, v{8+j}\nv_and_b32 v{Aa+2*j+1}, s14, v{8+j}")
    for i in range(10):
        k(f"v_mul_f32 v{72+i}, {f32(-LOG2E)}, v{Aa+i}")
    for i in range(10):
        k(f"v_exp_f32 v{72+i}, v{72+i}")
    for i in range(10):
        k(f"v_add_f32 v{72+i}, 1.0, v{72+i}")
    for i in range(10):
        k(f"v_rcp_f32 v{72+i}, v{72+i}")
    for i in range(10):
        k(f"v_mul_f32 v{72+i}, v{72+i}, v{Aa+i}")
    for j in range(5):
        k(f"v_cvt_pk_bf16_f32 v{8+j}, v{72+2*j}, v{73+2*j}")
    for j in range(5):
        k(f"v_lshlrev_b32 v{Aa+2*j}, 16, v{8+j}\nv_and_b32 v{Aa+2*j+1}, s14, v{8+j}")
    ACC = 8
    for i in range(10):
        k(f"s_waitcnt vmcnt({9-i})")
        for j in range(4):
            k(f"v_lshlrev_b32 v{72+2*j}, 16, v{W+4*i+j}\nv_and_b32 v{73+2*j}, s14, v{W+4*i+j}")
        for j in range(8):
            if i == 0: k(f"v_mul_f32 v{ACC+j}, v{72+j}, v{Aa}")
            else: k(f"v_fmac_f32 v{ACC+j}, v{72+j}, v{Aa+i}")
    dpp_sum16(k, list(range(ACC, ACC+8)), steps=(8, 4))
    k(f"""
    v_lshrrev_b32 v1, 4, v0
    v_lshlrev_b32 v1, 7, v1
    v_lshl_add_u32 v1, v2, 5, v1
    ds_write_b128 v1, v[8:11]
    ds_write_b128 v1, v[12:15] offset:16
    v_and_b32 v1, 31, v0
    v_lshlrev_b32 v1, 2, v1
    s_waitcnt lgkmcnt(0)
    s_barrier
    """)
    for i in range(16):
        k(f"ds_read_b32 v{8+i}, v1 offset:{128*i}")
    k(f"""
    s_sub_u32 s13, s12, 20
    s_cmp_lt_u32 s13, 20
    s_cselect_b32 s15, 1.0, 0
    s_sub_u32 s13, s12, 80
    s_cmp_lt_u32 s13, 20
    s_cselect_b32 s15, 1.0, s15
    s_lshl_b32 s12, s12, 7
    s_waitcnt lgkmcnt(0)
    """)
    for i in range(1, 8): k(f"v_pk_add_f32 v[8:9], v[8:9], v[{8+2*i}:{9+2*i}]")
    k(f"""
    v_add_f32 v8, v8, v9
    v_cvt_pk_bf16_f32 v8, v8, v8
    v_and_b32 v8, s14, v8
    v_add_f32 v8, s15, v8
    v_cvt_pk_bf16_f32 v8, v8, v8
    v_and_b32 v8, s14, v8
    v_cmp_gt_u32 vcc, 32, v0
    s_and_saveexec_b64 s[28:29], vcc
    s_cbranch_execz {Lend}
    buffer_store_dword v8, v1, s[20:23], s12 offen offset:{WS_MOD}
    s_lshr_b32 s12, s12, 1
    s_add_u32 s12, s12, {WS_MODH}
    v_lshrrev_b32 v1, 1, v1
    buffer_store_short_d16_hi v8, v1, s[20:23], s12 offen
    """)
    stamp_flush(k, 0, 2, 20)
    k(f"{Lend}:\ns_endpgm")
    return k, dict(grid=248, block=256, lds=2048, vgpr=88)
```

```python
from common import *
from k1 import dpp_sum16
from pack import pack

def interleave(mfmas, fillers):
    out = []
    n = len(mfmas); done = 0
    for j, (pre, m, post) in enumerate(mfmas):
        out += pre + [m] + post
        upto = (j+1)*len(fillers)//n
        out += fillers[done:upto]; done = upto
    return out

def k2():
    k = K("qkv")
    Lh, Lend, Lv = k.label("helper"), k.label("end"), k.label("vtype")
    ACC, BF, AR, AT, SB, TMP = 16, 96, 116, 196, 204, 236
    VDMA, VTR, VTR2, VSB, VA = 1, 6, 11, 244, 245
    SLOT = 20480; TAB = 5*SLOT
    stamp_init(k)
    k(f"""
    s_cmp_ge_u32 s2, 256
    s_cbranch_scc1 {Lend}
    s_load_dwordx2 s[4:5], s[0:1], {A_WQKV}
    s_load_dwordx2 s[6:7], s[0:1], {A_WS}
    s_and_b32 s12, s2, 7               ; xcd
    s_lshr_b32 s13, s2, 3              ; i
    s_cmp_ge_u32 s13, 24
    s_cbranch_scc1 {Lh}
    s_mul_i32 s14, s13, 43
    s_lshr_b32 s14, s14, 7             ; mloc = i/3
    s_mul_i32 s15, s14, 3
    s_sub_u32 s15, s13, s15            ; type 0=Q 1=K 2=V
    s_and_b32 s28, s12, 1
    s_lshl_b32 s28, s28, 3
    s_add_u32 s14, s14, s28            ; mblk
    s_lshr_b32 s12, s12, 1
    v_lshrrev_b32 v16, 6, v0
    v_and_b32 v17, 63, v0              ; lane
    v_readfirstlane_b32 s29, v16       ; wave
    s_mul_i32 s30, s15, 1280
    s_mul_i32 s31, s12, 320
    s_add_u32 s30, s30, s31
    s_lshl_b32 s14, s14, 2
    s_add_u32 s14, s14, s29
    """)
    k(f"""
    v_lshrrev_b32 v18, 4, v17
    v_bfe_u32 v19, v17, 2, 2
    v_and_b32 v20, 3, v17
    v_lshl_add_u32 v21, v16, 4, v19    ; 16w + row
    """)
    for i in range(5):
        k(f"""
        v_add_u32 v22, {4*i}, v18
        v_mul_u32_u24 v23, 13, v22
        v_lshrrev_b32 v23, 6, v23          ; /5
        v_mul_u32_u24 v24, 5, v23
        v_sub_u32 v22, v22, v24            ; cb
        v_lshl_add_u32 v23, v23, 2, v21
        v_mul_u32_u24 v23, 3840, v23
        v_lshl_add_u32 v23, v22, 6, v23
        v_lshl_add_u32 v{VDMA+i}, v20, 4, v23
        """)
    k(f"""
    v_and_b32 v22, 0x33, v17
    v_bfe_u32 v23, v17, 2, 1
    v_lshl_or_b32 v22, v23, 3, v22
    v_bfe_u32 v23, v17, 3, 1
    v_lshl_or_b32 v22, v23, 2, v22
    s_cmp_eq_u32 s15, 2
    s_cselect_b64 vcc, -1, 0
    v_cndmask_b32 v22, v17, v22, vcc
    v_lshlrev_b32 v{VA}, 4, v22
    v_lshlrev_b32 v25, 4, v0
    s_mul_i32 s31, s14, 40960
    s_add_u32 s31, s31, {WS_XH}
    s_waitcnt lgkmcnt(0)
    """)
    srd(k, 16, 4, 640*3840)
    srd(k, 20, 6, WS_END)
    k(f"""
    s_add_u32 s24, s6, s31
    s_addc_u32 s25, s7, 0
    s_mov_b32 s26, 40960
    s_mov_b32 s27, 0x20000
    buffer_load_dwordx4 v[28:31], v25, s[20:23], 0 offen offset:{WS_MOD}
    buffer_load_dwordx4 v[32:35], v25, s[20:23], 0 offen offset:{WS_MOD+2560}
    s_mul_i32 s32, s29, 5120
    s_mov_b32 s33, 0                   ; A offset
    """)
    def group(c):
        g = []
        for i in range(5):
            g.append([f"s_add_u32 m0, s32, {(c % 5)*SLOT + 1024*i}", "s_nop 0" if False else None,
                      f"buffer_load_dwordx4 v{VDMA+i}, s[16:19], s30 offen lds"])
        for i in range(4):
            r = AR + 16*(c % 5) + 4*i
            g.append([f"buffer_load_dwordx4 v[{r}:{r+3}], v{VA}, s[24:27], s33 offen offset:{1024*i}"])
        g.append([f"s_add_u32 s30, s30, {64*3840}", "s_add_u32 s33, s33, 4096"])
        return [[x for x in b if x] for b in g]
    for c in range(4):
        for b in (group(c) if c < 3 else group(c)[:3]):
            if len(b) == 2 and "m0" in b[0]: k(b[0]); k("s_nop 0"); k(b[1])
            else:
                for x in b: k(x)
    k(f"""
    v_and_b32 v22, 1, v18              ; G&1
    v_lshrrev_b32 v23, 5, v17          ; hh
    v_mul_u32_u24 v24, 2560, v23
    v_lshl_add_u32 v24, v19, 6, v24    ; hh*2560 + r*64
    v_lshl_add_u32 v26, v22, 2, v20    ; 4(G&1)+c
    v_and_b32 v27, 1, v20
    v_lshrrev_b32 v36, 1, v20
    v_lshl_add_u32 v27, v27, 1, v36    ; 2(c&1)+(c>>1)
    v_mul_u32_u24 v36, 20, v22
    v_add_u32 v27, v27, v36
    v_mul_u32_u24 v36, 5, v26
    v_add_u32 v36, 4, v36
    v_lshlrev_b32 v{VSB}, 6, v23
    v_add_u32 v{VSB}, {TAB}, v{VSB}
    """)
    for t in range(5):
        if t < 4: k(f"v_add_u32 v37, {5*t}, v27")
        else: k("v_mov_b32 v37, v36")
        k(f"""
        v_add_u32 v38, {8*t}, v26
        v_cndmask_b32 v37, v37, v38, vcc
        v_lshrrev_b32 v38, 3, v37
        v_and_b32 v37, 7, v37
        v_lshl_add_u32 v38, v38, 8, v24
        v_lshl_add_u32 v{VTR+t}, v37, 3, v38
        v_add_u32 v{VTR2+t}, {3*SLOT}, v{VTR+t}
        """)
    k(f"""
    v_lshrrev_b32 v22, 1, v0
    v_and_b32 v23, 1, v0
    v_lshlrev_b32 v22, 6, v22
    v_lshl_add_u32 v22, v23, 4, v22
    v_add_u32 v22, {TAB}, v22
    v_cmp_gt_u32 vcc, 160, v0
    s_waitcnt vmcnt(30)
    v_lshrrev_b32 v32, 16, v32
    v_lshrrev_b32 v34, 16, v34
    s_and_saveexec_b64 s[34:35], vcc
    ds_write_b128 v22, v[32:35]
    ds_write_b128 v22, v[28:31] offset:32
    s_mov_b64 exec, s[34:35]
    """)
    for i in range(80): k(f"v_mov_b32 v{ACC+i}, 0")
    k("s_waitcnt vmcnt(21) lgkmcnt(0)\ns_barrier")
    stamp(k, 1)
    def trreads(s, t):
        c = (s//4) % 5; sl = s % 4
        base, off = (VTR+t, c*SLOT) if c < 3 else (VTR2+t, (c-3)*SLOT)
        return [f"ds_read_b64_tr_b16 v[{BF+4*t+2*jj}:{BF+4*t+2*jj+1}], v{base} offset:{off + (4*sl+jj)*1280}" for jj in range(2)]
    def sbreads(s, sref):
        b = SB + 16*(s & 1)
        return [f"ds_read_b128 v[{b+4*j}:{b+4*j+3}], v{VSB} offset:{sref*128 + 16*j}" for j in range(4)]
    def transform(s):
        b = SB + 16*(s & 1); a = AR + 4*(s % 20); o = AT + 4*(s & 1)
        L = [f"v_dot2_f32_bf16 v{TMP+j}, v{a+j//2}, v{b+j}, v{b+8+j}" for j in range(8)]
        L += [f"v_cvt_pk_bf16_f32 v{o+j}, v{TMP+2*j}, v{TMP+2*j+1}" for j in range(4)]
        return L
    for x in sbreads(0, 0): k(x)
    for t in range(5):
        for x in trreads(0, t) + sbreads(1, 1)[t:t+1]: k(x)
    k("s_waitcnt lgkmcnt(14)")
    tr0 = transform(0)
    for x in tr0[:8]: k(x)
    k("s_nop 0")
    for x in tr0[8:]: k(x)
    k("s_mov_b32 s36, 0")
    k(f"s_cmp_eq_u32 s15, 2\ns_cbranch_scc1 {Lv}")
    def mainloop(vtype):
        Ll = k.label("loop")
        k(".p2align 3")
        k(f"{Ll}:")
        pend = group(3)[3:]
        for s in range(20):
            if s % 4 == 3:
                k("s_waitcnt vmcnt(18)\ns_barrier")
                pend = group(s//4 + 4)
            sb = sbreads(s+2, s+2); tf = transform(s+1)
            ms = []
            for t in range(5):
                d = vr(ACC+16*t, 16); w = vr(BF+4*t, 4); x = vr(AT+4*(s & 1), 4)
                m = f"v_mfma_f32_32x32x16_bf16 {d}, {x}, {w}, {d}" if vtype else f"v_mfma_f32_32x32x16_bf16 {d}, {w}, {x}, {d}"
                pre = {0: ["s_waitcnt lgkmcnt(9)"], 2: ["s_waitcnt lgkmcnt(8)"], 4: ["s_waitcnt lgkmcnt(12)"]}.get(t, [])
                post = trreads(s+1, t) + ([sb[t]] if t < 4 else [])
                ms.append((pre, m, post))
            nv = {3: 3, 0: 3, 1: 3, 2: 1}[s % 4]
            vm = pend[:nv]; pend = pend[nv:]
            out = []
            for t, (pre, m, post) in enumerate(ms):
                b = vm[t] if t < len(vm) else []
                if t == 4: post = tf[9:12] + post
                if len(b) == 2 and "m0" in b[0]: out += pre + [b[0], m, b[1]] + post
                else: out += pre + [m] + b + post
                if t == 2: out += tf[0:5]
                if t == 3: out += tf[5:9]
            for x in out: k(x)
        k(f"""
        v_add_u32 v{VSB}, {20*128}, v{VSB}
        s_add_u32 s36, s36, 1
        s_cmp_lt_u32 s36, 2
        s_cbranch_scc1 {Ll}
        """)
    mainloop(False)
    stamp(k, 2)
    k(f"""
    s_mov_b32 s38, {KVT}
    s_mov_b32 s39, {WS_KV}
    s_cmp_eq_u32 s15, 0
    s_cselect_b32 s38, {QT}, s38
    s_cselect_b32 s39, {WS_Q}, s39
    s_cselect_b32 s40, {f32(20**-0.5*LOG2E)}, 1.0
    s_mov_b32 s41, s40
    s_lshl_b32 s37, s38, 6
    s_mul_i32 s38, s38, s14
    s_add_u32 s39, s39, s38
    s_lshl_b32 s38, s12, 3
    s_mul_i32 s38, s38, s37
    s_add_u32 s39, s39, s38
    v_and_b32 v1, 63, v0
    v_lshrrev_b32 v2, 5, v1
    v_mul_lo_u32 v2, s37, v2
    v_and_b32 v3, 31, v1
    v_lshl_add_u32 v2, v3, 3, v2
    v_lshlrev_b32 v1, 4, v1
    s_lshl_b32 s43, s37, 2
    """)
    for t in range(4):
        for u in range(2):
            a = ACC + 16*t + 8*u; o = BF + 4*((2*t+u) % 5)
            for j in range(4): k(f"v_pk_mul_f32 v[{a+2*j}:{a+2*j+1}], v[{a+2*j}:{a+2*j+1}], s[40:41]")
            if u == 0: k(f"s_mul_i32 s42, s37, {t}\ns_add_u32 s42, s42, s39")
            else: k("s_add_u32 s42, s42, s43")
            if t == 0 and u == 0: k("s_waitcnt lgkmcnt(0)")
            for j in range(4): k(f"v_cvt_pk_bf16_f32 v{o+j}, v{a+2*j}, v{a+2*j+1}")
            k(f"buffer_store_dwordx4 v[{o}:{o+3}], v1, s[20:23], s42 offen")
    for g in range(4):
        a = ACC + 64 + 4*g
        for j in range(2): k(f"v_pk_mul_f32 v[{a+2*j}:{a+2*j+1}], v[{a+2*j}:{a+2*j+1}], s[40:41]")
        k(f"s_mul_i32 s42, s37, {2*g}\ns_add_u32 s42, s42, s39")
        for j in range(2): k(f"v_cvt_pk_bf16_f32 v{a+j}, v{a+2*j}, v{a+2*j+1}")
        k(f"buffer_store_dwordx2 v[{a}:{a+1}], v2, s[20:23], s42 offen offset:1024")
    stamp_flush(k, 1, 4, 20)
    k("s_endpgm")
    k(f"{Lv}:")
    mainloop(True)
    stamp(k, 2)
    k(f"""
    s_mul_i32 s38, s14, {KVT}
    s_mul_i32 s39, s12, {8*64*KVT}
    s_add_u32 s39, s39, s38
    s_add_u32 s39, s39, {WS_KV + 1280}
    s_mov_b32 s37, {64*KVT}
    v_and_b32 v1, 31, v0
    v_bfe_u32 v2, v0, 5, 1
    v_mul_u32_u24 v2, 336, v2
    v_lshrrev_b32 v3, 2, v1
    v_mul_lo_u32 v3, s37, v3
    v_and_b32 v4, 3, v1
    v_mul_u32_u24 v4, 336, v4
    v_add_u32 v3, v3, v4
    v_mov_b32 v8, 0x3f803f80
    v_mov_b32 v9, 0x3f803f80
    v_mov_b32 v10, 0x3f803f80
    v_mov_b32 v11, 0x3f803f80
    buffer_store_dwordx4 v[8:11], v3, s[20:23], s39 offen offset:320
    s_waitcnt lgkmcnt(0)
    """)
    for t in range(5):
        k(f"""
        v_add_u32 v4, {32*t}, v1
        v_mul_u32_u24 v5, 205, v4
        v_lshrrev_b32 v5, 12, v5           ; /20
        v_mul_u32_u24 v6, 20, v5
        v_sub_u32 v4, v4, v6
        v_mul_lo_u32 v5, s37, v5
        v_lshl_add_u32 v4, v4, 4, v2
        v_add_u32 v4, v4, v5
        """)
        for u in range(2):
            a = ACC + 16*t + 8*u; o = BF + 4*((2*t+u) % 5)
            for j in range(4): k(f"v_cvt_pk_bf16_f32 v{o+j}, v{a+2*j}, v{a+2*j+1}")
            k(f"buffer_store_dwordx4 v[{o}:{o+3}], v4, s[20:23], s39 offen offset:{672*u}")
    stamp_flush(k, 1, 4, 20)
    k("s_endpgm")
    k(f"{Lh}:")
    k("s_sub_u32 s13, s13, 24\ns_lshl_b32 s13, s13, 3\ns_add_u32 s13, s13, s12")
    pack(k, 13, 64, 5)
    code_prefetch(k, "back_kernel", 40, 56, 2, 3)
    stamp(k, 1); stamp(k, 2)
    stamp_flush(k, 1, 4, 20)
    k(f"{Lend}:\ns_endpgm")
    return k, dict(grid=256, block=256, lds=5*24576, vgpr=248)
```

```python
from common import *
def pack(k, sj, stride, nit):
    k(f"""
    s_load_dwordx2 s[16:17], s[0:1], {A_WO}
    s_load_dwordx4 s[8:11], s[0:1], {A_WG}
    s_load_dwordx2 s[14:15], s[0:1], {A_WD}
    v_lshrrev_b32 v16, 6, v0
    v_and_b32 v17, 63, v0
    v_readfirstlane_b32 s29, v16       ; wave
    v_lshrrev_b32 v18, 4, v17          ; q
    v_bfe_u32 v19, v17, 2, 2           ; r
    v_and_b32 v20, 3, v17              ; c / piece
    v_lshlrev_b32 v1, 4, v17
    """)
    for i in range(5):
        k(f"""
        v_add_u32 v21, {4*i}, v18
        v_cmp_le_u32 vcc, 10, v21
        v_mul_u32_u24 v22, 1280, v19
        v_lshl_add_u32 v22, v20, 4, v22
        v_cndmask_b32_e64 v{7+i}, 0, 1, vcc
        v_mul_u32_u24 v23, 10, v{7+i}
        v_sub_u32 v21, v21, v23
        v_lshl_add_u32 v{2+i}, v21, 6, v22
        """)
    for i in range(3):
        k(f"""
        v_add_u32 v21, {4*i}, v18
        v_cmp_le_u32 vcc, 6, v21
        v_lshlrev_b32 v22, 4, v20
        s_nop 0
        v_cndmask_b32_e64 v23, 0, 1, vcc
        v_lshl_add_u32 v24, v23, 2, v19
        v_mul_u32_u24 v24, 3072, v24
        v_mul_u32_u24 v23, 6, v23
        v_sub_u32 v21, v21, v23
        v_lshl_add_u32 v22, v21, 6, v22
        v_add_u32 v{12+i}, v22, v24
        """)
    k(f"""
    v_mul_u32_u24 v21, 5120, v18
    v_lshl_add_u32 v21, v19, 6, v21
    v_mul_u32_u24 v22, 10, v16
    """)
    for n in range(3):
        if n < 2: k(f"v_add3_u32 v23, v22, v20, {4*n}\nv_mov_b32 v31, 0")
        else: k("v_lshrrev_b32 v23, 1, v20\nv_add3_u32 v23, v22, v23, 8\nv_and_b32 v31, 1, v20\nv_lshlrev_b32 v31, 3, v31")
        k(f"""
        v_lshrrev_b32 v32, 2, v23
        v_and_b32 v23, 3, v23
        v_lshl_add_u32 v32, v32, 8, v21
        v_lshl_add_u32 v32, v23, 4, v32
        v_add_u32 v{24+n}, v32, v31
        """)
    k(f"""
    v_mul_u32_u24 v21, 6144, v18
    v_lshl_add_u32 v21, v19, 6, v21
    v_mul_u32_u24 v22, 12, v16
    """)
    for n in range(4):
        e, mixed = n >> 1, n & 1
        if not mixed: k(f"v_add3_u32 v23, v22, v20, {6*e}\nv_mov_b32 v31, 0")
        else: k(f"v_and_b32 v23, 1, v20\nv_add3_u32 v23, v22, v23, {6*e+4}\nv_lshrrev_b32 v31, 1, v20\nv_mul_u32_u24 v31, 3072, v31")
        k(f"""
        v_lshrrev_b32 v32, 3, v23
        v_and_b32 v23, 7, v23
        v_lshl_add_u32 v32, v32, 8, v21
        v_lshl_add_u32 v32, v23, 3, v32
        v_add_u32 v{27+n}, v32, v31
        """)
    k("v_mov_b32 v15, 0x40000000\ns_waitcnt lgkmcnt(0)")
    srd(k, 32, 16, 640*1280)
    srd(k, 36, 8, 640*3072)
    srd(k, 40, 10, 640*3072)
    srd(k, 44, 14, 1536*1280)
    L1, L1o, L1d, L1n, L1t, L1m = [k.label(x) for x in ("l1", "l1od", "l1dn", "l1nx", "l1t", "l1m")]
    k(f"""
    s_mov_b32 s48, s{sj}
    s_mov_b32 s49, 0
    {L1}:
    s_cmp_ge_u32 s48, 160
    s_cbranch_scc1 {L1o}
    s_lshr_b32 s50, s48, 3             ; ks
    s_and_b32 s51, s48, 7
    s_lshl_b32 s50, s50, 2
    s_add_u32 s50, s50, s29
    s_mul_i32 s50, s50, {8*3072}
    s_mul_i32 s51, s51, 384
    s_add_u32 s50, s50, s51
    s_mul_i32 s51, s29, 6144
    s_add_u32 s51, s51, s49
    """)
    for i in range(6):
        k(f"s_add_u32 m0, s51, {1024*i}\ns_nop 0\nbuffer_load_dwordx4 v{12+i%3}, s[{36+4*(i//3)}:{39+4*(i//3)}], s50 offen lds")
    k(f"""
    s_branch {L1n}
    {L1o}:
    s_and_b32 s52, s48, 1
    s_mul_i32 s52, s52, 640
    s_mul_i32 s51, s29, 5120
    s_add_u32 s51, s51, s49
    s_cmp_ge_u32 s48, 200
    s_cbranch_scc1 {L1d}
    s_sub_u32 s50, s48, 160
    s_lshr_b32 s50, s50, 1             ; ks
    s_mul_i32 s54, s50, 52
    s_lshr_b32 s54, s54, 8             ; G = ks/5
    s_mul_i32 s55, s54, 5
    s_sub_u32 s55, s50, s55            ; r
    s_mul_i32 s54, s54, 40
    s_cmp_eq_u32 s55, 4
    s_cbranch_scc1 {L1t}
    s_lshr_b32 s53, s29, 1
    s_lshl1_add_u32 s55, s55, s53
    s_mul_i32 s55, s55, 5
    s_add_u32 s54, s54, s55
    s_and_b32 s53, s29, 1
    s_add_u32 s54, s54, s53
    s_mov_b32 s55, {2*5120}
    s_branch {L1m}
    {L1t}:
    s_mul_i32 s53, s29, 10
    s_add_u32 s54, s54, s53
    s_add_u32 s54, s54, 4
    s_mov_b32 s55, {5*5120}
    {L1m}:
    s_mul_i32 s54, s54, 5120
    s_add_u32 s54, s54, s52
    """)
    for i in range(5):
        k(f"s_add_u32 m0, s51, {1024*i}\nv_mad_u32_u24 v33, v{7+i}, s55, v{2+i}\nbuffer_load_dwordx4 v33, s[32:35], s54 offen lds")
    k(f"""
    s_add_u32 m0, s49, 20480
    s_nop 0
    buffer_load_dwordx4 v15, s[32:35], 0 offen lds
    s_branch {L1n}
    {L1d}:
    s_sub_u32 s50, s48, 200
    s_lshr_b32 s50, s50, 1
    s_lshl_b32 s50, s50, 2
    s_add_u32 s50, s50, s29
    s_mul_i32 s54, s50, {8*1280}
    s_add_u32 s54, s54, s52
    s_movk_i32 s55, 5120
    """)
    for i in range(5):
        k(f"s_add_u32 m0, s51, {1024*i}\nv_mad_u32_u24 v33, v{7+i}, s55, v{2+i}\nbuffer_load_dwordx4 v33, s[44:47], s54 offen lds")
    k(f"""
    s_add_u32 m0, s49, 20480
    s_nop 0
    buffer_load_dwordx4 v15, s[44:47], 0 offen lds
    {L1n}:
    s_add_u32 s48, s48, {stride}
    s_add_u32 s49, s49, 24576
    s_cmp_lt_u32 s49, {24576*nit}
    s_cbranch_scc1 {L1}
    """)
    L2, L2o, L2n, L2e = [k.label(x) for x in ("l2", "l2od", "l2nx", "l2e")]
    F = 40
    k(f"""
    s_mov_b32 s48, s{sj}
    s_mov_b32 s49, 0
    {L2}:
    s_cmp_ge_u32 s48, 296
    s_cbranch_scc1 {L2e}
    s_waitcnt vmcnt({6*(nit-1)})
    s_barrier
    s_cmp_ge_u32 s48, 160
    s_cbranch_scc1 {L2o}
    """)
    for e in range(2):
        for t in range(3):
            for jj in range(2):
                r = F + 12*e + 4*t + 2*jj
                k(f"ds_read_b64_tr_b16 v[{r}:{r+1}], v{27+2*e+(t == 2)} offset:{1536*jj + (3072 if t == 1 else 0)}")
    k(f"""
    s_lshr_b32 s50, s48, 3
    s_and_b32 s51, s48, 7
    s_lshl_b32 s51, s51, 2
    s_add_u32 s51, s51, s29
    s_mul_i32 s51, s51, 40
    s_add_u32 s50, s50, s51
    s_mul_i32 s50, s50, 3072
    s_add_u32 s50, s50, {WS_PWG}
    s_add_u32 s51, s50, {20*3072}
    """)
    for e in range(2):
        for t in range(3):
            r = F + 12*e + 4*t
            k(f"s_waitcnt lgkmcnt({10 - 6*e - 2*t})\nbuffer_store_dwordx4 v[{r}:{r+3}], v1, s[20:23], s{50+e} offen offset:{1024*t} sc1")
    k(f"s_branch {L2n}\n{L2o}:")
    for t in range(5):
        for jj in range(2):
            r = F + 4*t + 2*jj
            k(f"ds_read_b64_tr_b16 v[{r}:{r+1}], v{24+t//2} offset:{2560*jj + (8*(t & 1) if t < 4 else 0)}")
    k(f"""
    s_and_b32 s51, s48, 1
    s_lshl_b32 s51, s51, 2
    s_add_u32 s51, s51, s29            ; nb
    s_mov_b32 s52, {WS_PWO}
    s_cmp_ge_u32 s48, 200
    s_cselect_b32 s52, {WS_PWD}, s52
    s_cselect_b32 s53, 48, 20
    s_cselect_b32 s54, 40, 0
    s_sub_u32 s50, s48, 160
    s_sub_u32 s50, s50, s54
    s_lshr_b32 s50, s50, 1
    s_mul_i32 s51, s51, s53
    s_add_u32 s50, s50, s51
    s_mul_i32 s50, s50, 5120
    s_add_u32 s50, s50, s52
    s_add_u32 s51, s50, 4096
    """)
    for t in range(5):
        r = F + 4*t
        k(f"s_waitcnt lgkmcnt({8 - 2*t})\nbuffer_store_dwordx4 v[{r}:{r+3}], v1, s[20:23], s{50+t//4} offen offset:{1024*(t % 4)} sc1")
    k(f"buffer_store_dwordx4 v[{F}:{F+3}], v15, s[20:23], 0 offen")
    k(f"{L2n}:")
    for r in range(24, 31): k(f"v_add_u32 v{r}, 24576, v{r}")
    k(f"""
    s_add_u32 s48, s48, {stride}
    s_add_u32 s49, s49, 1
    s_cmp_lt_u32 s49, {nit}
    s_cbranch_scc1 {L2}
    {L2e}:
    """)
```

```python
from asm import I, need

def text(x): return x if isinstance(x, str) else x[2] if x[0] in ("vm", "lg") else None
def kind(x):
    t = text(x)
    if t is None: return "S"
    if t.startswith(("buffer", "ds_", "global")): return "M"
    if t.startswith("s_"): return "S"
    if t.startswith(("v_exp", "v_rcp", "v_rsq", "v_permlane", "v_log", "v_sqrt")): return "T"
    return "V"

class Sched:
    def __init__(self, k, emit):
        self.k, self.emit = k, emit
    def hazard_free(self, t):
        c = I(t); d = 0
        for l in reversed(self.k.L[-14:]):
            if l.endswith(":") or l.startswith((".", ";")): continue
            p = I(l)
            if need(p, c) > d: return False
            d += p.states
        return True
    def run(self, mfmas, pins, timed, stream, budget=8, window=14):
        stream = list(stream); timed = [list(q) for q in timed]
        rw = {}
        def RW(x):
            t = text(x)
            if t not in rw:
                i = I(t); rw[t] = (i.r, i.w)
            return rw[t]
        def ready(n):
            x = stream[n]
            if text(x) is None: return n == 0
            r, w = RW(x)
            for y in stream[:n]:
                if text(y) is None: return False
                if kind(x) == "M" and kind(y) == "M": return False
                r2, w2 = RW(y)
                if r & w2 or w & w2 or w & r2: return False
            return True
        def take(kinds):
            for n in range(min(window, len(stream))):
                if kind(stream[n]) in kinds and ready(n) and (text(stream[n]) is None or self.hazard_free(text(stream[n]))):
                    return n
            return None
        def due(g, kd, force=False):
            best = None
            for q in timed:
                if q and kind(q[0][2]) == kd and q[0][0] <= g and (not force or q[0][1] <= g):
                    if text(q[0][2]) and not self.hazard_free(text(q[0][2])): continue
                    if best is None or q[0][1] < best[0][1]: best = q
            return best
        for x in pins.get(-1, []): self.emit(x)
        for g, m in enumerate(mfmas):
            while not self.hazard_free(m): self.k("s_nop 0")
            self.emit(m)
            bud = budget; used_s = False; used_m = False
            pin = pins.get(g, [])
            def scalar():
                q = due(g, "S")
                if q: self.emit(q.pop(0)[2]); return True
                n = take("S")
                if n is not None: self.emit(stream.pop(n)); return True
                return False
            barrier = any(text(x) == "s_barrier" or x[0] == "call" for x in pin)
            if barrier or len(pin) > 1:
                for x in pin: self.emit(x)
                pin = []; used_s = True
            forced = due(g, "M", True)
            q = forced or due(g, "M"); n = take("M")
            havet = take("T") is not None; havev = take("V") is not None
            slack = q and not forced and q[0][1] - g >= 2
            work = havet or havev
            wants = due(g, "S") is not None or take("S") is not None
            use_m = (q or n is not None) and not used_s and not (havet and (slack or not q)) and not ((pin or (wants and (slack or not q))) and work)
            if forced or use_m:
                if n is not None and not forced: self.emit(stream.pop(n))
                else: self.emit(q.pop(0)[2])
                used_m = True; bud -= 4
            for x in pin:
                self.emit(x); used_s = True
                if used_m: bud -= 4
            if not used_s and not used_m: scalar()
            while True:
                q = due(g, "M", True) or due(g, "S", True)
                if not q: break
                self.emit(q.pop(0)[2])
            while bud > 0:
                n = take("T") if bud >= 8 else None
                c = 8
                if n is None: n = take("V"); c = 4
                if n is None:
                    if scalar(): bud -= 4; continue
                    break
                self.emit(stream.pop(n)); bud -= c
        left = [x for q in timed for (_, _, x) in q]
        return left, stream
    def flush(self, items):
        for x in items:
            t = text(x)
            while t and not self.hazard_free(t): self.k("s_nop 0")
            self.emit(x)

def spread(bundles, a, b, slack=3):
    q = []
    for i, bu in enumerate(bundles):
        g = a + (b - a)*i//max(1, len(bundles))
        for x in bu: q.append((g, g + slack, x))
    return q

def simulate(lines):
    t_any = valu = mf = 0
    for l in lines:
        if l.endswith(":") or l.startswith((".", ";")): continue
        if l.startswith(("v_mfma", "v_smfmac")):
            s = max(t_any, valu, mf); occ = 4 if "x16_bf16" in l and "16x16" in l else 8
            t_any = s + 4; valu = s + occ; mf = s + (16 if "16x16" in l else 32)
        else:
            kd = kind(l)
            if kd == "S": t_any += 4*(int(l.split()[1])+1 if l.startswith("s_nop") else 1)
            elif kd == "M": s = t_any; t_any = s + 8; valu = max(valu, s+8); mf = max(mf, s+12)
            else:
                s = max(t_any, valu)
                if l.startswith(("v_pk_", "v_dot")): s = max(s, mf + 12 if mf > 0 else s)
                t_any = valu = s + (8 if kd == "T" else 4)
    return max(t_any, valu, mf)
```

```python
import sys, importlib
import common
from common import *
def build(kernels, path):
    head = open("cdna_kernels/" + NAME + ".s.ref").read().split("; Override launch")[0]
    launches, codes, kds = [], [], []
    for fn in kernels:
        k, cfg = fn()
        code, kd = kernel_text(k, cfg["vgpr"], cfg.get("sgpr", 96), cfg.get("accum"))
        launches.append(f"; @launch kernel={k.name}_kernel grid=({cfg['grid']},1,1) block=({cfg['block']},1,1) lds={cfg['lds']}")
        codes.append(code); kds.append(kd)
    txt = head + "\n".join(launches) + '\n.amdgcn_target "amdgcn-amd-amdhsa--gfx950"\n' + "".join(codes) + 'L_text_end:\n.section .rodata,"a"\n' + "".join(kds)
    open(path, "w").write(txt)
if __name__ == "__main__":
    out = sys.argv[1]
    if "diag" in sys.argv[2:]: common.DIAG = True
    from k1 import k1
    from front import front, FUSED
    from back import back
    build([front, back] if FUSED else [k1, front, back], out)
```

```python
from common import *
import common
from sched import Sched, spread, simulate

class Track:
    def __init__(self, k, name, mx):
        self.k, self.name, self.mx, self.seq = k, name, mx, []
        self.waited, self.seen = set(), set()
    def op(self, tag):
        assert tag not in self.waited, f"op {tag} issued after its wait"
        self.seq.append(tag); self.seen.add(tag)
    def n(self, *tags):
        assert all(t in self.seen for t in tags), f"wait on unseen {tags}"
        self.waited |= set(tags)
        idx = [i for i, t in enumerate(self.seq) if t in tags]
        if not idx: return None
        return len(self.seq) - 1 - max(idx)
    def done(self, n): self.seq = self.seq[len(self.seq)-n:] if n else []

COST = lambda s: 8 if s.startswith(("v_exp", "v_rcp", "v_rsq", "v_permlane")) else 9 if s.startswith("buffer") else 5 if s.startswith("ds_") else 4

import os
def env(n, d): return type(d)(eval(os.environ[n])) if n in os.environ else d
USEM = env("USEM", 1); PRE_T = env("PRE_T", 29); UCA = env("UCA", 14); NA0 = env("NA0", 12)
WS1 = env("WS1", 0); WOE = env("WOE", 80); WS2 = env("WS2", 0); WP0 = env("WP0", 10); DM1 = env("DM1", 45); DM2 = env("DM2", 45)
SIGK = env("SIGK", 10); P2I = env("P2I", 3); P2C = env("P2C", 10); P3I = env("P3I", 16); NT1 = env("NT1", 6); TPACE = env("TPACE", 60)
S4K = env("S4K", 1); S5K = env("S5K", 12); P4I = env("P4I", 6); P4C = env("P4C", 13); P5I = env("P5I", 17); P5C = env("P5C", 25); LP = env("LP", 3); P3T = env("P3T", 1)
STAMPS = {"all": "q0 loop ost sig0 poll0 wo sig1 poll1 y2 p3 tail t1 t3", "gu": "loop wo west sig1 poll1 y2 p0 p1 p2 p3a p3b p3",
          "down": "p2 p3 tail poll3 sig4 sig5 poll4 t0 poll5 t1 t2 t3 red", "att": "karg iss q0 pre a8 a16 a24 loop cmb ost sig0 poll0"}[os.environ.get("STAMPS", "all")].split()
def back():
    k = K("back")
    Lend = k.label("end")
    vm, lg = Track(k, "vmcnt", 63), Track(k, "lgkmcnt", 15)
    def emit(x):
        if isinstance(x, str): k(x); return
        if x[0] == "call": x[1]()
        elif x[0] == "vm": k(x[2]); vm.op(x[1])
        elif x[0] == "lg": k(x[2]); lg.op(x[1])
        elif x[0] == "wait":
            p = []
            for tr, tags in ((vm, x[1]), (lg, x[2])):
                n = tr.n(*tags) if tags else None
                if n is not None:
                    n = min(n, tr.mx); p.append(f"{tr.name}({n})"); tr.done(n)
            if p: k("s_waitcnt " + " ".join(p))
    def E(L):
        for x in L: emit(x)
    cost = lambda x: COST(x) if isinstance(x, str) else 4 if x[0] == "wait" else COST(x[2])
    def pace(work, loads, every):
        c = 0; loads = list(loads)
        for x in work:
            emit(x); c += cost(x)
            if c >= every and loads: E(loads.pop(0)); c = 0
        return loads

    sc = Sched(k, emit)
    def report(name, n0):
        if os.environ.get("REP"): print(f"  {name}: est {simulate(k.L[n0:])} cycles, {len(k.L)-n0} lines")
    VL, VA, VLA, VSA, VB2, VX, VX4, VVP, VV4, VST, VT2, VCA, VCB, VFL = 1, 2, 3, 5, 6, 7, 8, 9, 10, 11, 12, 13, 14, 15
    X2 = 16
    A0, BR, XR, GA, S2, T0 = 36, 116, 176, 188, 208, 228
    ACC, AR, EXA, CON, TMP, OUT, WD0 = 36, 84, 114, 120, 132, 144, 156
    EXW = 108; EXS = 248
    VCM = 118; VLA2 = 119; VPC = 152; VSG = 153; VPK = 154; VPK2 = 155
    VAT = 254; VP1 = 255
    SLOT = 40960; XLDS = 102400; TABH = 3*SLOT; CONA = TABH + 4096; CONB = CONA + 2048; XCH = CONB + 4096; LDS = XCH + 24576
    WS = "s[20:23]"
    P = lambda r, j: f"v[{r+2*j}:{r+2*j+1}]"
    S = [28, 44, 60, 76]; O = [92, 108, 124, 140]; Q = [156, 162, 168, 174]; FR = 180; KT = 236
    IDX, VK2, VV, VTB, VXD, VPA, VC1, VC2 = 242, 243, 244, 245, 246, 249, 250, 251
    xaddr = "\n".join(f"v_add_u32 v25, {64*i}, v17\nv_min_u32 v25, 159, v25\nv_mul_u32_u24 v26, 205, v25\nv_lshrrev_b32 v26, 11, v26\nv_mul_u32_u24 v26, 1120, v26\nv_lshl_add_u32 v{VXD+i}, v25, 4, v26" for i in range(3))
    xrd = [[("lg", "xr", f"ds_read_b128 {vr(XR+4*pr, 4)}, v{XR+10} offset:{64*pr}")] for pr in range(2)] + [[("lg", "xr", f"ds_read_b64 {vr(XR+8, 2)}, v{XR+11} offset:128")]]
    stamp_init(k)
    sn = [0]
    def st_(nm):
        if nm in STAMPS: sn[0] += 1; stamp(k, sn[0])
    k(f"""
    s_cmp_ge_u32 s2, 256
    s_cbranch_scc1 {Lend}
    s_load_dwordx2 s[6:7], s[0:1], {A_WS}
    s_load_dwordx2 s[4:5], s[0:1], {A_X}
    s_load_dwordx2 s[8:9], s[0:1], {A_OUT}
    v_lshrrev_b32 v16, 6, v0
    v_and_b32 v17, 63, v0
    v_readfirstlane_b32 s29, v16       ; wave
    s_and_b32 s12, s2, 7
    s_bfe_u32 s13, s2, 0x20003
    s_lshl2_add_u32 s12, s12, s13      ; head
    s_lshr_b32 s13, s2, 5              ; q block
    s_and_b32 s14, s29, 1
    s_lshl1_add_u32 s13, s13, s14
    s_lshl_b32 s13, s13, 2
    s_mul_i32 s10, s12, {64*QT}
    s_mul_i32 s14, s13, {QT}
    s_add_u32 s10, s10, s14
    s_add_u32 s10, s10, {WS_Q}
    s_mul_i32 s11, s12, {64*KVT}
    s_add_u32 s11, s11, {WS_KV}
    s_lshr_b32 s14, s29, 1
    s_mul_i32 s3, s14, {32*KVT}
    s_add_u32 s3, s3, s11
    s_lshl1_add_u32 s13, s14, s13
    s_mul_i32 s63, s13, 40960
    s_lshr_b32 s14, s12, 3
    s_mul_i32 s14, s14, 10240
    s_add_u32 s63, s63, s14
    s_add_u32 s63, s63, {WS_O}
    s_and_b32 s14, s12, 7
    s_lshl_b32 s49, s14, 8
    s_add_u32 s49, s49, s63
    s_add_u32 s49, s49, 8192
    s_lshl_b32 s14, s14, 10
    s_add_u32 s63, s63, s14
    v_and_b32 v18, 31, v17
    v_lshrrev_b32 v19, 5, v17
    v_cmp_lt_u32 vcc, 31, v17
    v_lshlrev_b32 v27, 3, v18
    v_add_u32 v20, 1024, v27
    v_mov_b32 v21, 2560
    v_cndmask_b32 v{VK2}, v20, v21, vcc
    v_cmp_lt_u32 vcc, 15, v18
    v_lshlrev_b32 v20, 4, v18
    v_lshl_add_u32 v22, v19, 9, v20
    v_add_u32 v22, 1280, v22
    v_lshl_add_u32 v23, v19, 7, v20
    v_add_u32 v23, {2304 - 256}, v23
    v_cndmask_b32 v22, v22, v23, vcc
    v_mov_b32 v23, 256
    v_cndmask_b32_e64 v23, v23, 64, vcc
    v_cmp_lt_u32 vcc, 19, v18
    v_add_u32 v23, v22, v23
    v_mov_b32 v20, 0x40000000
    v_cndmask_b32 v22, v22, v21, vcc
    v_cndmask_b32 v23, v23, v21, vcc
    v_cmp_lt_u32 vcc, 20, v18
    s_nop 1
    v_cndmask_b32 v{VV}, v22, v20, vcc
    v_cndmask_b32 v{VPA}, v23, v20, vcc
    v_mov_b32 v{IDX}, 0xdddd
    s_and_b32 s12, s2, 7
    s_lshr_b32 s13, s2, 7
    s_lshl1_add_u32 s12, s12, s13      ; cluster
    s_bfe_u32 s13, s2, 0x10006         ; sub
    s_bfe_u32 s14, s2, 0x30003         ; nb
    s_bfe_u32 s15, s2, 0x40003
    v_lshlrev_b32 v{VL}, 4, v17
    s_add_u32 s36, s10, {2*QT}
    s_mov_b32 s18, 0x10000
    s_mov_b32 s19, 0x20000
    s_waitcnt lgkmcnt(0)
    """)
    st_("karg")
    ws_base(k, 6, 16)
    srd(k, 20, 6, WS_END)
    def kvload(t):
        f = FR + 14*(t % 4)
        return [("vm", f"kv{t}", f"buffer_load_dwordx4 {vr(f, 4)}, v{VL}, s[16:19], 0 offen"),
                ("vm", f"kv{t}", f"buffer_load_dwordx2 {vr(f+12, 2)}, v{VK2}, s[16:19], 0 offen"),
                ("vm", f"kv{t}", f"buffer_load_dwordx4 {vr(f+4, 4)}, v{VV}, s[16:19], 0 offen"),
                ("vm", f"kv{t}", f"buffer_load_dwordx4 {vr(f+8, 4)}, v{VPA}, s[16:19], 0 offen"),
                f"s_add_u32 s16, s16, {KVT}"]
    if USEM:
        emit(("vm", "q0", f"buffer_load_dwordx4 {vr(KT, 4)}, v{VL}, {WS}, s11 offen"))
        emit(("vm", "q0", f"buffer_load_dwordx2 {vr(KT+4, 2)}, v{VK2}, {WS}, s11 offen"))
    for b in range(4):
        emit(("vm", f"q{b}", f"buffer_load_dwordx4 {vr(Q[b], 4)}, v{VL}, {WS}, s{(10, 36)[b >> 1]} offen offset:{QT*(b & 1)}"))
        emit(("vm", f"q{b}", f"buffer_load_dwordx2 {vr(Q[b]+4, 2)}, v27, {WS}, s{(10, 36)[b >> 1]} offen offset:{QT*(b & 1) + 1024}"))
    k("s_add_u32 s16, s6, s3\ns_mov_b32 s17, s7")
    E(kvload(0))
    Lp = k.label("pc")
    k(f"""
    v_cmp_gt_u32 s[56:57], 32, v17
    s_mov_b32 s45, 0xffff0000
    s_lshl_b32 s28, s12, 2
    s_add_u32 s30, s28, s29
    s_mul_i32 s34, s14, 102400
    s_mul_i32 s38, s29, 25600
    s_add_u32 s34, s34, s38
    s_add_u32 s34, s34, {WS_PWO}
    s_add_u32 s34, s34, s6
    s_mov_b32 s35, s7
    s_mul_i32 s37, s14, 160
    s_lshl2_add_u32 s39, s15, s29
    s_mul_i32 s40, s39, 61440
    s_add_u32 s40, s40, {WS_PWG + 4096}
    s_add_u32 s40, s40, s6
    s_mov_b32 s41, s7
    s_and_b32 s50, s2, 0x87
    s_lshl_b32 s50, s50, 8
    s_add_u32 s50, s50, {WS_FLAG}
    s_lshr_b32 s97, s12, 1
    s_lshl_b32 s97, s97, 13
    s_add_u32 s97, s97, {WS_FLAG}
    v_lshlrev_b32 v{VP1}, 5, v27
    v_and_b32 v19, 15, v17
    v_lshlrev_b32 v{VFL}, 2, v19
    ; x tile through LDS: piece P = 64i + lane -> row P/10, piece P%10
    s_mul_i32 s60, s29, 3072
    s_add_u32 s60, s60, {XLDS}
    s_lshl1_add_u32 s61, s30, s13
    s_mul_i32 s61, s61, {16*1280}
    s_add_u32 s61, s61, s37
    s_add_u32 s4, s4, s61
    s_addc_u32 s5, s5, 0
    {xaddr}
    v_cmp_lt_u32 vcc, 19, v17
    v_mov_b32 v25, {WS_MOD + 2*2560}
    v_mov_b32 v26, {WS_MOD + 4*2560 - 320}
    v_cndmask_b32 v25, v25, v26, vcc
    v_cmp_lt_u32 vcc, 39, v17
    v_mov_b32 v26, {WS_MOD + 5*2560 - 640}
    s_lshl_b32 s36, s29, 10
    v_cndmask_b32 v25, v25, v26, vcc
    v_lshl_add_u32 v25, s37, 1, v25
    s_add_u32 s62, s36, {TABH}
    s_add_u32 s36, s36, {WS_MODH + 3*1280}
    v_mov_b32 v26, s36
    s_cmp_eq_u32 s29, 3
    s_cselect_b64 vcc, -1, 0
    v_cndmask_b32 v25, v26, v25, vcc
    v_add_u32 v{VTB}, v25, v{VL}
    s_getpc_b64 s[0:1]
    {Lp}:
    v_lshlrev_b32 v{VC1}, 4, v27
    v_min_u32 v25, 47, v17
    s_mul_i32 s36, s29, 48
    v_add_lshl_u32 v25, s36, v25, 7
    v_min_u32 v{VC2}, L_text_end-{Lp}-16384-4, v25
    """)
    E(kvload(1))
    late1 = f"""
    v_lshrrev_b32 v18, 8, v{VL}        ; q
    v_lshlrev_b32 v{VV4}, 4, v18
    v_add_u32 v{VV4}, {TABH + 3072}, v{VV4}
    v_lshlrev_b32 v{VVP}, 5, v18
    v_add_u32 v{VVP}, {TABH + 3072}, v{VVP}
    v_cmp_eq_u32 vcc, 0, v0
    s_lshl_b32 s44, s2, 8
    s_add_u32 s44, s44, {WS_FLAG}
    v_mov_b32 v19, 0x40000000
    v_cndmask_b32_e64 v{VSA}, v19, 0, vcc
    s_lshl2_add_u32 s55, s15, s50
    s_lshl2_add_u32 s42, s14, s29
    s_mul_i32 s42, s42, 61440
    s_add_u32 s42, s42, {WS_PWD}
    s_add_u32 s42, s42, s6
    s_mov_b32 s43, s7
    s_mul_i32 s52, s29, 6144
    s_add_u32 s52, s52, {XCH}
    """
    late2 = f"""
    v_lshrrev_b32 v19, 2, v{VFL}       ; tok
    v_lshlrev_b32 v20, 4, v19
    v_lshl_add_u32 v{VLA}, v18, 9, v20
    s_lshl_b32 s31, s13, 8
    v_add_u32 v{VA}, s31, v{VLA}
    s_mul_i32 s46, s30, 40960
    s_add_u32 s32, s46, {WS_O + 4096}
    s_add_u32 s32, s32, s6
    s_mov_b32 s33, s7                  ; o fragments
    v_add_u32 v{VLA+1}, {SLOT}, v{VLA}
    v_add_u32 v{VB2}, 51200, v{VL}
    v_lshrrev_b32 v22, 1, v18          ; q>>1
    v_and_b32 v23, 1, v18
    v_lshlrev_b32 v23, 30, v23
    v_lshl_add_u32 v{VST}, v19, 3, v23
    v_lshl_add_u32 v{VST}, v22, 2, v{VST}
    v_lshl_add_u32 v24, v22, 8, v20
    v_add_u32 v{VT2}, v24, v23
    v_add_u32 v{VCA}, {CONA}, v20
    v_lshlrev_b32 v24, 5, v19
    v_lshl_add_u32 v24, v18, 3, v24
    v_add_u32 v{VCB}, {CONB}, v24
    v_and_b32 v24, 0x1ff, v{VA}
    v_lshrrev_b32 v24, 1, v24
    v_lshl_add_u32 v{VAT}, v18, 9, v24
    s_mul_i32 s36, s14, 5120
    s_add_u32 s46, s46, s36
    s_add_u32 s46, s46, {WS_Y2}
    s_add_u32 s47, s46, s31
    s_add_u32 s47, s47, 4096
    s_lshl1_add_u32 s48, s30, s13
    s_lshl3_add_u32 s48, s48, s14
    s_lshl_b32 s48, s48, 7
    s_add_u32 s48, s48, {WS_STAT}
    """
    late3 = f"""
    s_mul_i32 s40, s28, 40960
    s_add_u32 s40, s40, {WS_Y2}
    s_add_u32 s40, s40, s6
    s_lshl_b32 s51, s29, 11
    s_add_u32 s34, s40, s51
    s_mul_i32 s53, s29, 10240
    s_add_u32 s40, s40, s53
    s_add_u32 s40, s40, 8192
    s_lshl_b32 s54, s30, 11
    s_add_u32 s54, s54, {WS_STAT}
    s_mul_i32 s16, s28, 98304
    s_add_u32 s16, s16, {WS_HH}
    s_add_u32 s16, s16, s6
    s_mul_i32 s58, s29, {48*512}
    s_add_u32 s58, s58, s16
    s_add_u32 s58, s58, 4096
    s_mov_b32 s59, s7
    s_mul_i32 s36, s39, 1536
    s_add_u32 s16, s16, s36
    s_mov_b32 s24, s8
    s_mov_b32 s25, s9
    s_mov_b32 s26, {2048*1280}
    s_mov_b32 s27, 0x20000
    v_add_u32 v{VPC}, s50, v{VFL}
    v_add_u32 v{VPK}, s52, v{VL}
    s_add_u32 s36, s53, {SLOT}
    v_add_u32 v{VPK2}, s36, v{VL}
    v_add_u32 v{VLA2}, {2*SLOT}, v{VLA}
    v_and_b32 v{VCM}, 0x1ff, v{VT2}
    v_add_u32 v{VCM}, {CONA}, v{VCM}
    v_bfe_u32 v{TMP}, v{VL}, 8, 1
    v_lshlrev_b32 v{TMP}, 10, v{TMP}
    v_lshl_add_u32 v{TMP}, v{VFL}, 1, v{TMP}
    v_and_b32 v{TMP+1}, 0x200, v{VL}
    v_add_u32 v{TMP}, v{TMP}, v{TMP+1}
    v_lshrrev_b32 v{TMP+1}, 6, v{VL}
    v_bfe_u32 v{TMP+2}, v{VL}, 4, 2
    v_mul_u32_u24 v{VX}, 1280, v{TMP+1}
    v_add_u32 v{VX}, s61, v{VX}
    v_lshl_add_u32 v{VX4}, v{TMP+2}, 3, v{VX}
    v_lshl_add_u32 v{VX}, v{TMP+2}, 4, v{VX}
    v_lshlrev_b32 v{VV4}, 4, v{TMP+2}
    v_add_u32 v{VV4}, {TABH + 3072}, v{VV4}
    v_lshl_add_u32 v{VVP}, v{TMP+2}, 4, v{VV4}
    v_lshl_add_u32 v{TMP+1}, v{TMP+2}, 2, v{TMP+1}
    v_and_b32 v{TMP+1}, 15, v{TMP+1}
    v_lshl_add_u32 v{TMP+1}, v{TMP+2}, 4, v{TMP+1}
    v_lshlrev_b32 v{VST}, 4, v{TMP+1}
    v_lshrrev_b32 v{TMP+1}, 2, v{VL}
    v_and_b32 v{TMP+1}, 0xc0, v{TMP+1}
    v_add_u32 v{TMP+1}, v{TMP+1}, v{VL}
    v_and_b32 v{TMP+1}, 0xf0, v{TMP+1}
    v_and_b32 v{VB2}, 0x300, v{VL}
    v_add_u32 v{VB2}, v{VB2}, v{TMP+1}
    s_mul_i32 s36, s29, 5120
    v_add_u32 v{VB2}, s36, v{VB2}
    """
    def vec_reads(base, v, tag):
        g = [[("lg", tag, f"ds_read_b128 {vr(base+4*j, 4)}, v{VVP} offset:{320*v + 128*(j >> 1) + 16*(j & 1)}")] for j in range(4)]
        return g + [[("lg", tag, f"ds_read_b128 {vr(base+16, 4)}, v{VV4} offset:{320*v + 256}")]]
    def wd_reg(n):
        if n < 4: return ar(240 + 4*n, 4)
        if n < 10: return ar(4*(27 + n - 4), 4)
        if n < 35: return vr(WD0 + 4*(n - 10), 4)
        if n < 45: return ar(4*(33 + n - 35), 4)
        return ar(4*(n - 45), 4)
    parked = lambda n: 4 <= n < 10 or 35 <= n < 45
    def wd_load(n):
        if parked(n):
            n0, sb, off = (4, "s52", 0) if n < 10 else (35, "s53", SLOT)
            b = [f"s_add_u32 m0, {sb}, {off + 1024*(n - n0 - (n & 3))}"] if n == n0 or n & 3 == 0 else []
            b.append(("vm", f"pk{n0}", f"global_load_lds_dwordx4 v{VL}, s[42:43] offset:{1024*(n & 3)}"))
        else: b = [("vm", f"wd{n}", f"global_load_dwordx4 {wd_reg(n)}, v{VL}, s[42:43] offset:{1024*(n & 3)}")]
        if n & 3 == 3: b.append("s_add_u32 s42, s42, 4096")
        return b
    def unpark(n): return ("lg", "upk", f"ds_read_b128 {wd_reg(n)}, v{VPK if n < 10 else VPK2} offset:{1024*(n - (4 if n < 10 else 35))}")
    def bread(ks, t):
        o = (5*ks + t)*1024; r = BR + 20*(ks % 3) + 4*t
        base, o = (VL, o) if o < 51200 else (VB2, o - 51200)
        return ("lg", f"b{ks}_{t}", f"ds_read_b128 v[{r}:{r+3}], v{base} offset:{o}")
    for b in range(4):
        for i in range(16): k(f"v_mov_b32 v{O[b]+i}, 0")
    for i in range(4): k(f"v_mov_b32 v{FR+14*3+8+i}, 0")
    E(kvload(2))
    qa = lambda n, a, b: f"v_mfma_f32_32x32x16_bf16 {vr(n, 16)}, {vr(a, 4)}, {vr(b, 4)}, 0"
    qb = lambda n, a, b: f"v_mfma_f32_32x32x8_bf16 {vr(n, 16)}, {vr(a, 2)}, {vr(b+4, 2)}, {vr(n, 16)}"
    pv = lambda o, a, b: f"v_smfmac_f32_32x32x32_bf16 {vr(o, 16)}, {vr(a, 4)}, {vr(b, 8)}, v{IDX}"
    def rowmax(c, dst, first):
        if first: return [f"v_max3_f32 v{dst}, v{c}, v{c+1}, v{c+2}"] + [f"v_max3_f32 v{dst}, v{dst}, v{c+i}, v{c+i+1}" for i in range(3, 15, 2)] + [f"v_max_f32 v{dst}, v{dst}, v{c+15}"]
        return [f"v_max3_f32 v{dst}, v{dst}, v{c+i}, v{c+i+1}" for i in range(0, 16, 2)]
    st_("iss")
    for b in range(4):
        emit(("wait", [f"q{b}"], []))
        if b == 0: st_("q0")
        k(f"v_cndmask_b32 v{Q[b]+4}, 0, v{Q[b]+4}, s[56:57]\nv_cndmask_b32 v{Q[b]+5}, 0, v{Q[b]+5}, s[56:57]")
        if USEM: sc.flush([qa(S[b], KT, Q[b]), qb(S[b], KT+4, Q[b])])
    if USEM:
        for b in range(4): sc.flush(rowmax(S[b], 16+b, True) + [f"v_mov_b32 v{20+b}, v{16+b}"])
        sc.flush([f"v_permlane32_swap_b32 v{16+b}, v{20+b}" for b in range(4)])
        sc.flush([f"v_max_f32 v{16+b}, v{16+b}, v{20+b}" for b in range(4)])
        sc.flush([f"v_cvt_pk_bf16_f32 v{16+b}, -v{16+b}, 0" for b in range(4)])
        sc.flush([f"v_cndmask_b32 v{Q[b]+4}, v{16+b}, v{Q[b]+4}, s[56:57]" for b in range(4)])
    emit(("wait", ["kv0"], []))
    sc.flush([qa(S[0], FR, Q[0]), qb(S[0], FR+12, Q[0]), qa(S[1], FR, Q[1]), qb(S[1], FR+12, Q[1])])
    for i in range(8): k(f"v_mov_b32 v{S[3]+8+i}, 0")
    k("s_nop 1")
    cp = lambda va: ("vm", "pre", f"global_load_dword v26, v{va}, s[0:1]")
    cpa = ["s_add_u32 s0, s0, 4096", "s_addc_u32 s1, s1, 0"]
    pre = [(["s_mov_b32 m0, s62"], [("vm", "pre", f"buffer_load_dwordx4 v{VTB}, {WS}, 0 offen lds")])]
    for i in range(3): pre.append(([f"s_add_u32 m0, s60, {1024*i}"], [("vm", "pre", f"global_load_lds_dwordx4 v{VXD+i}, s[4:5]")]))
    for i in range(4):
        pre[i][1].extend(("vm", "pre", f"global_load_dwordx4 {ar(4*n, 4)}, v{VL}, s[40:41] offset:{1024*(n & 7) - 4096}") for n in (2*i, 2*i+1))
    for i in range(0, 25, 4):
        pre.append(([f"s_add_u32 m0, s38, {1024*i}"] + (["s_add_u32 s34, s34, 4096"] if i else []),
                    [("vm", "pre", f"global_load_lds_dwordx4 v{VL}, s[34:35] offset:{1024*(n & 3)}") for n in range(i, min(i+4, 25))]))
    for i in range(8, 60, 4):
        pre.append((["s_add_u32 s40, s40, 8192"] if i % 8 == 0 else [],
                    [("vm", "pre", f"global_load_dwordx4 {ar(4*n, 4)}, v{VL}, s[40:41] offset:{1024*(n & 7) - 4096}") for n in range(i, i+4)]))
    for at in (4, 11, 18): pre.insert(at, (cpa, [cp(VC1)]))
    pre.append((cpa, [cp(VC2), ("vm", "pre", f"buffer_load_dword v26, v{VFL}, {WS}, s50 offen offset:128 sc1")]))
    npre = len(pre); ip = 0
    st_("pre")
    k(".p2align 3")
    for u in range(128):
        if u % 32 == 0: st_(f"a{u//4}")
        b = u & 3; t = u >> 2
        c = S[b]; p = S[(b-1) & 3]; n = S[(b+2) & 3]
        fk = FR + 14*(((u+2) >> 2) % 4); fv = FR + 14*(t % 4); fp = FR + 14*(((u-1) >> 2) % 4)
        e = lambda *ii: [k(f"v_exp_f32 v{c+i}, v{c+i}") for i in ii]
        sa = sb_ = sc_ = []
        if b == 0 and t + 3 < 32: kv = kvload(t+3); sa, sb_ = kv[0:4], kv[4:]
        if b == 1 and t + 1 < 32: sb_ = [("wait", [f"kv{t+1}"], [])]
        if b == 2 and ip < npre and ip*PRE_T <= t*npre:
            sa, sc_ = pre[ip]; ip += 1
        e(0, 1)
        k(pv(O[(b-1) & 3], fp+8, p+8)); E(sa)
        e(2, 3, 4, 5)
        if u + 2 < 128: k(qa(n, fk, Q[(b+2) & 3]))
        E(sb_)
        e(6, 7, 8, 9)
        k(pv(O[b], fv+4, c)); E(sc_)
        e(10, 11, 12, 13)
        if u + 2 < 128: k(qb(n, fk+12, Q[(b+2) & 3]))
        e(14, 15)
    assert ip == npre
    Lk1, Lj = k.label("kh1"), k.label("join")
    k(f"""
    s_mul_i32 s36, s29, 6144
    s_add_u32 s36, s36, {XCH}
    {pv(O[3], FR+14*3+8, S[3]+8)}
    v_add_u32 v16, s36, v{VL}
    s_xor_b32 s36, s29, 2
    s_mul_i32 s36, s36, 6144
    s_add_u32 s36, s36, {XCH}
    v_add_u32 v17, s36, v{VL}
    """)
    st_("loop")
    F = [S[0], S[1]]; RR = S[2]
    emit(("wait", ["pre"], []))
    k(f"s_cmp_ge_u32 s29, 2\ns_cbranch_scc1 {Lk1}")
    for kh in range(2):
        if kh: k(f"{Lk1}:")
        oth = [2 - 2*kh, 3 - 2*kh]
        sc.flush([f"ds_write_b128 v16, {vr(O[oth[i]]+4*j, 4)} offset:{3072*i + 1024*j}" for i in range(2) for j in range(3)])
        k("s_waitcnt lgkmcnt(0)\ns_barrier")
        for i in range(2):
            for j in range(3): k(f"ds_read_b128 {vr(RR+12*i+4*j, 4)}, v17 offset:{3072*i + 1024*j}")
        for i in range(2):
            k(f"s_waitcnt lgkmcnt({3-3*i})")
            for j in range(6): k(f"v_pk_add_f32 {P(F[i], j)}, {P(O[2*kh+i], j)}, {P(RR+12*i, j)}")
        if kh == 0: k(f"s_branch {Lj}")
    k(f"{Lj}:")
    st_("cmb")
    Lfb = [k.label("fb0"), k.label("fb1")]; Lrt = [k.label("rt0"), k.label("rt1")]
    for i in range(2):
        k(f"v_mov_b32 v{18+2*i}, v{F[i]+8}\nv_mov_b32 v{19+2*i}, v{F[i]+8}\nv_pk_mul_f32 v[22:23], {P(F[i], 0)}, 0 op_sel_hi:[1,0]")
        for j in range(1, 6): k(f"v_pk_fma_f32 v[22:23], {P(F[i], j)}, 0, v[22:23] op_sel_hi:[1,0,1]")
        k(f"""
        v_permlane32_swap_b32 v{18+2*i}, v{19+2*i}
        v_add_f32 v22, v22, v23
        v_add_f32 v22, v22, v{19+2*i}
        v_cmp_ngt_f32 vcc, {f32(2.0**120)}, v22
        s_cbranch_vccnz {Lfb[i]}
        """)
        if not USEM: k(f"v_cmp_nlt_f32 vcc, {f32(2.0**-80)}, v22\ns_cbranch_vccnz {Lfb[i]}")
        k(f"{Lrt[i]}:")
    k(f"""
    v_rcp_f32 v18, v19
    v_rcp_f32 v20, v21
    v_lshrrev_b32 v22, 9, v{VL}
    v_mul_u32_u24 v22, 40960, v22
    v_add_u32 v22, v22, v27
    s_add_u32 s36, s63, 40960
    """)
    for i in range(2):
        for j in range(6): k(f"v_pk_mul_f32 {P(F[i], j)}, {P(F[i], j)}, v[{18+2*i}:{19+2*i}] op_sel_hi:[1,0]")
        for j in (4, 5, 0, 1, 2, 3): k(f"v_cvt_pk_bf16_f32 v{RR+6*i+j}, v{F[i]+2*j}, v{F[i]+2*j+1}")
        emit(("vm", "o", f"buffer_store_dwordx4 {vr(RR+6*i, 4)}, v{VL}, {WS}, s{(63, 36)[i]} offen sc1"))
    k(f"v_permlane32_swap_b32 v{RR+4}, v{RR+10}\nv_permlane32_swap_b32 v{RR+5}, v{RR+11}")
    emit(("vm", "o", f"buffer_store_dwordx2 {vr(RR+4, 2)}, v22, {WS}, s49 offen sc1"))
    st_("ost")
    def signal(v, vd=VSG):
        k(f"v_mov_b32 v{vd}, {v+1}\ns_barrier")
        if v: emit(("vm", f"sg{v}", f"buffer_store_dword v{vd}, v{VSA}, {WS}, s55 offen offset:128"))
        emit(("vm", f"sg{v}", f"buffer_store_dword v{vd}, v{VSA}, {WS}, s44 offen sc1"))
    def poll_issue(v): return ("vm", f"poll{v}", f"buffer_load_dword v0, v{VPC}, {WS}, 0 offen offset:128 sc1" if v else f"buffer_load_dword v0, v{VP1}, {WS}, s97 offen sc1")
    def poll_check(v):
        L, Lok = k.label("poll"), k.label("ok")
        emit(("wait", [f"poll{v}"], []))
        ld = f"s_and_b32 s36, s49, 3\ns_cselect_b32 s36, 0, 9\ns_cselect_b32 s3, 128, 0\ns_add_u32 s3, s3, s50\nv_lshlrev_b32 v0, s36, v{VFL}\nbuffer_load_dword v0, v0, {WS}, s3 offen sc1" if v else poll_issue(0)[2]
        slow.append(f"""
        {L}:
        s_mov_b32 s49, 0
        {L}b:
        s_add_u32 s49, s49, 1
        {ld}
        s_waitcnt vmcnt(0)
        v_cmp_gt_u32 vcc, {v+1}, v0
        s_cbranch_vccz {Lok}
        s_cmp_lt_u32 s49, 0x40000
        s_cbranch_scc1 {L}b
        s_branch {Lok}
        """)
        k(f"v_cmp_gt_u32 vcc, {v+1}, v0\ns_cbranch_vccnz {L}\n{Lok}:")
    slow = []
    VR = A0; UC = A0 + 16; VU = 30
    k(late1)
    k(f"""
    v_bfe_u32 v{VU}, v{VL}, 6, 1
    v_mul_u32_u24 v{VU}, 1280, v{VU}
    v_sub_u32 v{VU}, v{VV4}, v{VU}
    v_subrev_u32 v{VU}, {3072 - 1280}, v{VU}
    """)
    def vread(ks): return ("lg", f"v{ks}", f"ds_read_b128 {vr(VR+4*(ks % 4), 4)}, v{VU} offset:{64*ks}")
    for ks in range(3): emit(vread(ks))
    for n in range(min(4, WS1)): E(wd_load(n))
    k(f"""
    v_mul_u32_u24 v{XR+10}, 40, v{VFL}
    v_add_u32 v{XR+10}, s60, v{XR+10}
    v_lshl_add_u32 v{XR+11}, v18, 3, v{XR+10}
    v_lshl_add_u32 v{XR+10}, v18, 4, v{XR+10}
    """)
    def ucsteps(k0, k1, extra):
        mf, pins, rq = [], {}, []
        for ks in range(k0, k1):
            pins[3*(ks-k0)-1] = [("wait", [], [f"v{ks}"])]
            for j in range(3):
                d = vr(UC+4*j, 4)
                mf.append(f"v_mfma_f32_16x16x32_bf16 {d}, {vr(VR+4*(ks % 4), 4)}, {ar(12*ks+4*j, 4)}, {d if ks else 0}")
            if ks + 3 < 20: rq.append((3*(ks-k0), 3*(ks-k0)+1, vread(ks+3)))
        left, rest = sc.run(mf, pins, [rq, spread(extra, 1, len(mf) - 1, 2)], [])
        sc.flush(left)
    ucsteps(0, UCA, xrd + vec_reads(GA, 0, "eo") + vec_reads(S2, 1, "eo"))
    emit(("wait", ["o"], []))
    signal(0, 34)
    st_("sig0")
    sc.flush([x for n in range(4, WS1) for x in wd_load(n)])
    ucsteps(UCA, 20, [])
    k(late2)
    emit(poll_issue(0))
    emit(("wait", [], ["xr", "eo"]))
    for j in range(10): k(f"v_lshlrev_b32 v{T0+2*j}, 16, v{XR+j}\nv_and_b32 v{T0+2*j+1}, s45, v{XR+j}")
    for ks in range(3):
        for t in range(5): emit(bread(ks, t))
    for j in range(3): k(f"v_cndmask_b32 v{VR+j}, 0, v{UC+4*j}, s[56:57]")
    for j in range(3): k(f"v_cvt_pk_bf16_f32 v{EXS+2*j}, v{VR+j}, v{VR+j}")
    for j in range(3): k(f"v_and_b32 v{VR+4+j}, s45, v{EXS+2*j}")
    for j in range(3): k(f"v_sub_f32 v{VR+j}, v{VR+j}, v{VR+4+j}")
    for j in range(3): k(f"v_cvt_pk_bf16_f32 v{EXS+2*j+1}, v{VR+j}, v{VR+j}")
    poll_check(0)
    st_("poll0")
    def aload(ks):
        o = 2048*(ks & 3) - 4096
        if ks % 5 < 4: b = [("vm", f"A{ks}", f"global_load_dwordx4 {vr(A0+4*ks, 4)}, v{VA}, s[32:33] offset:{o} sc1")]
        else: b = [("vm", f"A{ks}", f"global_load_dwordx2 {vr(A0+4*ks+2*jj, 2)}, v{VAT}, s[32:33] offset:{o + 256*jj} sc1") for jj in range(2)]
        return b + (["s_add_u32 s32, s32, 8192"] if ks & 3 == 3 else [])
    for ks in range(NA0): E(aload(ks))
    n0 = len(k.L)
    mf, pins, rq = [], {}, []
    for ks in range(20):
        pins[5*ks-1] = [("wait", [f"A{ks}"], [f"b{ks}_4"])]
        for t in range(5):
            d = vr(X2+4*t, 4)
            mf.append(f"v_mfma_f32_16x16x32_bf16 {d}, {vr(BR+20*(ks % 3)+4*t, 4)}, {vr(A0+4*ks, 4)}, {d if ks else 0}")
            if ks + 3 < 20: rq.append((5*ks+t, 5*ks+t+4, bread(ks+3, t)))
    left, _ = sc.run(mf, pins, [rq, spread([aload(ks) for ks in range(NA0, 20)], 0, 5*(20-NA0), 2) + spread([wd_load(n) for n in range(WS1, 10)], 5*(20-NA0), WOE, 2)], [])
    sc.flush(left)
    report("wo", n0)
    st_("wo")
    P = lambda r, j: f"v[{r+2*j}:{r+2*j+1}]"
    Y = GA; SU, SQ = XR, XR+2
    W = [f"v_mov_b32 v{EXW+i}, v{EXS+i}" for i in range(6)]
    W += [f"v_pk_fma_f32 {P(X2,j)}, {P(X2,j)}, {P(GA,j)}, {P(T0,j)}" for j in range(10)]
    W += [f"v_pk_mul_f32 {P(T0,j)}, {P(X2,j)}, {P(S2,j)}" for j in range(10)]
    for j in (8, 9): W += [f"v_cvt_pk_bf16_f32 v{Y+j}, v{T0+2*j}, v{T0+2*j+1}", f"v_cvt_pk_bf16_f32 v{Y+j+2}, v{T0+2*j}, v{T0+2*j+1}"]
    for pr in range(2):
        W += [f"v_cvt_pk_bf16_f32 v{Y+j}, v{T0+2*j}, v{T0+2*j+1}" for j in range(4*pr, 4*pr+4)]
        W.append(("vm", "y2", f"buffer_store_dwordx4 v[{Y+4*pr}:{Y+4*pr+3}], v{VA}, {WS}, s46 offen offset:{2048*pr} sc1"))
    W += [f"v_permlane16_swap_b32 v{Y+8}, v{Y+10}", f"v_permlane16_swap_b32 v{Y+9}, v{Y+11}",
          f"v_and_b32 v{T0}, 0x100, v{VT2}", f"v_add_u32 v{T0}, v{T0}, v{VT2}",
          ("vm", "y2", f"buffer_store_dwordx4 v[{Y+8}:{Y+11}], v{T0}, {WS}, s47 offen sc1"),
          f"v_pk_add_f32 {P(SU,0)}, {P(X2,0)}, {P(X2,1)}", f"v_pk_mul_f32 {P(SQ,0)}, {P(X2,0)}, {P(X2,0)}"]
    for j in range(1, 10):
        if j > 1: W.append(f"v_pk_add_f32 {P(SU,0)}, {P(SU,0)}, {P(X2,j)}")
        W.append(f"v_pk_fma_f32 {P(SQ,0)}, {P(X2,j)}, {P(X2,j)}, {P(SQ,0)}")
    W += [f"v_add_f32 v{SU}, v{SU}, v{SU+1}", f"v_add_f32 v{SU+1}, v{SQ}, v{SQ+1}", "s_nop 1",
          f"v_permlane32_swap_b32 v{SU}, v{SU+1}", f"v_add_f32 v{SQ}, v{SU}, v{SU+1}", f"v_add_f32 v{SQ+1}, v{SU}, v{SU+1}", "s_nop 1",
          f"v_permlane16_swap_b32 v{SQ}, v{SQ+1}", f"v_add_f32 v{SQ}, v{SQ}, v{SQ+1}",
          ("vm", "y2", f"buffer_store_dword v{SQ}, v{VST}, {WS}, s48 offen sc1")]
    sc.flush(W)
    st_("west")
    for n in range(10, 10+WS2): E(wd_load(n))
    emit(("wait", ["y2"], []))
    signal(1)
    st_("sig1")
    k(late3)
    emit(poll_issue(1))
    poll_check(1)
    st_("poll1")
    def dma0(j):
        return [f"s_add_u32 m0, s51, {8192*j}"] + (["s_add_u32 s34, s34, 8192"] if j else []) + \
               [("vm", f"p0_{j}", f"global_load_lds_dwordx4 v{VL}, s[34:35] offset:{1024*i} sc1") for i in range(2)]
    def dmap(p):
        g = []
        for i in range(10):
            if i & 3 == 0: g.append([f"s_add_u32 m0, s53, {(p % 3)*SLOT + 1024*i}", f"s_add_u32 s40, s40, {4096 if i else 40960 - 8192}"])
            g.append([("vm", f"p{p}", f"global_load_lds_dwordx4 v{VL}, s[40:41] offset:{1024*(i & 3)} sc1")])
        return g
    SJ = OUT
    for j in range(5):
        sc.flush(dma0(j))
        if j == 1:
            for i in range(4): emit(("vm", "stat", f"buffer_load_dwordx2 v[{SJ+2*i}:{SJ+2*i+1}], v{TMP}, {WS}, s54 offen offset:{128*i} sc1"))
    C0 = -2*LOG2E*0.7978845608028654
    def stats_ops():
        t = TMP
        L = [("wait", ["stat"], [])]
        for i in (1, 2, 3): L += [f"v_add_f32 v{SJ}, v{SJ}, v{SJ+2*i}", f"v_add_f32 v{SJ+1}, v{SJ+1}, v{SJ+2*i+1}"]
        L += [f"v_mov_b32 v{SJ+2}, v{SJ}", f"v_mov_b32 v{SJ+3}, v{SJ+1}",
              f"v_and_b32 v{t+8}, 0x1f0, v{VL}", f"s_lshl_b32 s36, s29, 9",
              f"v_permlane32_swap_b32 v{SJ}, v{SJ+2}", f"v_permlane32_swap_b32 v{SJ+1}, v{SJ+3}",
              f"v_add_f32 v{SJ}, v{SJ}, v{SJ+2}", f"v_add_f32 v{SJ+1}, v{SJ+1}, v{SJ+3}",
              f"v_mul_f32 v{SJ}, {f32(-1.0/640)}, v{SJ}",
              f"v_mul_f32 v{SJ+1}, {f32(1.0/640)}, v{SJ+1}",
              f"v_fma_f32 v{SJ+1}, -v{SJ}, v{SJ}, v{SJ+1}",
              f"v_max_f32 v{SJ+1}, 0, v{SJ+1}",
              f"v_add_f32 v{t+2}, {f32(1e-5)}, v{SJ+1}",
              f"v_rsq_f32 v{SJ+2}, v{t+2}",
              f"v_add_u32 v{t+8}, s36, v{t+8}",
              f"v_mul_f32 v{SJ+1}, v{t+2}, v{SJ+2}",
              f"v_mul_f32 v{t}, {f32(C0)}, v{SJ+2}",
              f"v_mul_f32 v{SJ+3}, v{SJ+2}, v{SJ+2}",
              f"v_mul_f32 v{SJ+3}, {f32(0.044715)}, v{SJ+3}",
              f"v_mul_f32 v{t+1}, v{SJ+3}, v{t}",
              f"v_cvt_pk_bf16_f32 v{SJ+2}, v{SJ}, v{SJ+1}",
              ("lg", "cw", f"ds_write_b128 v{t+8}, v[{t}:{t+3}] offset:{CONA - 65536*(CONA//65536)}"),
              f"v_lshlrev_b32 v{SJ+4}, 16, v{SJ+2}", f"v_and_b32 v{SJ+5}, s45, v{SJ+2}",
              f"v_sub_f32 v{SJ+6}, v{SJ}, v{SJ+4}", f"v_sub_f32 v{SJ+7}, v{SJ+1}, v{SJ+5}",
              f"v_cvt_pk_bf16_f32 v{t+4}, v{SJ+4}, v{SJ+6}", f"v_cvt_pk_bf16_f32 v{t+6}, v{SJ+5}, v{SJ+7}",
              f"v_cndmask_b32 v{t+4}, 0, v{t+4}, s[56:57]", f"v_cndmask_b32 v{t+6}, 0, v{t+6}, s[56:57]",
              f"v_lshrrev_b32 v{t+9}, 5, v{VL}", f"v_and_b32 v{t+9}, 16, v{t+9}",
              f"v_mov_b32 v{t+5}, v{t+4}", f"v_mov_b32 v{t+7}, v{t+6}",
              f"v_lshl_add_u32 v{t+9}, v{t+8}, 1, v{t+9}",
              f"v_subrev_u32 v{t+9}, {65536*(CONA//65536)}, v{t+9}",
              ("lg", "cw", f"ds_write_b128 v{t+9}, v[{t+4}:{t+7}] offset:{CONB - 65536*(CONA//65536)}")]
        i = L.index(f"s_lshl_b32 s36, s29, 9"); L.insert(i+1, f"s_add_u32 s36, s36, {65536*(CONA//65536)}")
        return [[x] for x in L]
    def con_reads(p):
        return [[("lg", f"c{p}", f"ds_read_b128 {vr(CON+4*t, 4)}, v{VCA} offset:{512*p + 256*t}")] for t in range(2)] + \
               [[("lg", f"c{p}", f"ds_read_b128 {vr(CON+8, 4)}, v{VCM} offset:{512*p}")]]
    def exa_reads(p):
        return [("lg", f"x{p}", f"ds_read_b64 {vr(EXA+2*t, 2)}, v{VCB} offset:{1024*p + 512*t}") for t in range(2)]
    def gelu_ops(p, packed=False):
        e = ACC + 24*(p & 1)
        L = [("wait", [], [f"c{p}"])]
        grp = [(e, e+4, CON, TMP, OUT), (e+12, e+16, CON+4, TMP+4, OUT+2), (e+8, e+20, CON+8, TMP+8, OUT+4)]
        sw = [f"v_permlane32_swap_b32 v{e+8+i}, v{e+20+i}" for i in range(4)]
        if packed:
            L += sw
            PP = lambda f: [f(g, u, c, t, j) for (g, u, c, t, o) in grp for j in range(2)]
            S1 = lambda f: [f(t+i) for (g, u, c, t, o) in grp for i in range(4)]
            L += PP(lambda g, u, c, t, j: f"v_pk_mul_f32 {P(t,j)}, {P(g,j)}, {P(g,j)}")
            L += PP(lambda g, u, c, t, j: f"v_pk_fma_f32 {P(t,j)}, {P(t,j)}, {P(c,0)}, {P(c,0)} op_sel:[0,1,0] op_sel_hi:[1,1,0]")
            L += PP(lambda g, u, c, t, j: f"v_pk_mul_f32 {P(t,j)}, {P(t,j)}, {P(g,j)}")
            L += S1(lambda r: f"v_exp_f32 v{r}, v{r}")
            L += PP(lambda g, u, c, t, j: f"v_pk_fma_f32 {P(t,j)}, {P(t,j)}, {P(c,1)}, {P(c,1)} op_sel_hi:[1,0,0]")
            L += S1(lambda r: f"v_rcp_f32 v{r}, v{r}")
            L += PP(lambda g, u, c, t, j: f"v_pk_mul_f32 {P(u,j)}, {P(u,j)}, {P(g,j)}")
            L += PP(lambda g, u, c, t, j: f"v_pk_mul_f32 {P(u,j)}, {P(u,j)}, {P(t,j)}")
        for n, (g, u, c, t, o) in enumerate(grp):
            if not packed:
                if n == 2: L += sw
                R = range(4)
                L += [f"v_mul_f32 v{t+i}, v{g+i}, v{g+i}" for i in R]
                L += [f"v_fma_f32 v{t+i}, v{t+i}, v{c+1}, v{c}" for i in R]
                L += [f"v_mul_f32 v{t+i}, v{t+i}, v{g+i}" for i in R]
                for i in R: L += [f"v_exp_f32 v{t+i}, v{t+i}", f"v_mul_f32 v{u+i}, v{u+i}, v{g+i}"]
                L += [f"v_fma_f32 v{t+i}, v{t+i}, v{c+2}, v{c+2}" for i in R]
                L += [f"v_rcp_f32 v{t+i}, v{t+i}" for i in R]
                L += [f"v_mul_f32 v{u+i}, v{u+i}, v{t+i}" for i in R]
            L += [f"v_cvt_pk_bf16_f32 v{o+j}, v{u+2*j}, v{u+2*j+1}" for j in range(2)]
            if n == 2: L += [f"v_cvt_pk_bf16_f32 v{o+2+j}, v{u+2*j}, v{u+2*j+1}" for j in range(2)]
        L += [f"v_permlane16_swap_b32 v{OUT}, v{OUT+2}", f"v_permlane16_swap_b32 v{OUT+1}, v{OUT+3}",
              ("vm", f"h{p}", f"buffer_store_dwordx4 {vr(OUT, 4)}, v{VL}, s[16:19], 0 offen sc1"),
              f"v_permlane16_swap_b32 v{OUT+4}, v{OUT+6}", f"v_permlane16_swap_b32 v{OUT+5}, v{OUT+7}",
              ("vm", f"h{p}", f"buffer_store_dwordx4 {vr(OUT+4, 4)}, v{VT2}, s[16:19], 0 offen offset:1024 sc1"),
              "s_add_u32 s16, s16, 98304"]
        return [[x] for x in L]
    def aread(gk, t):
        p, ks = divmod(gk, 20)
        return ("lg", f"a{gk}", f"ds_read_b128 {vr(AR+8*(gk % 3)+4*t, 4)}, v{(VLA, VLA+1, VLA2)[p % 3]} offset:{2048*ks + 256*t}")
    AD = [60, 172]; DA = 36; GB = 120
    def dload(t, ks):
        g = [("vm", f"d{t}_{ks}", f"global_load_dwordx4 {ar(AD[t & 1]+4*ks, 4)}, v{VA}, s[58:59] offset:{2048*(ks & 3) - 4096} sc1")]
        if ks & 3 == 3: g.append(f"s_add_u32 s58, s58, {8192 if ks < 11 else 98304 - 2*8192}")
        return g
    emit(("wait", ["p0_0"], [])); k("s_barrier")
    st_("y2")
    for gk in range(2):
        for t in range(2): emit(aread(gk, t))
    wdn = [10+WS2, 10+WS2+WP0, 35, 45, 60]
    for p in range(4):
        n0 = len(k.L)
        mf, pins, rq = [], {}, []
        for ks in range(21):
            gk = 20*p + ks
            pin = []
            if p == 0 and ks in (2, 6, 10, 14): pin += [("wait", [f"p0_{(ks+2)//4}"], []), "s_barrier"]
            if ks == 18 and p < 2: pin += [("wait", [f"p{p+1}"], ["cw"]), "s_barrier"]
            if ks == SIGK and p >= 2: pin += [("wait", [f"h{p-2}"], []), ("call", lambda p=p: (signal(p), st_(f"p{p}a")))]
            if ks == 18 and p == 2: pin += [("wait", ["p3"], []), "s_barrier"]
            if ks == P2C and p == 3: pin += [("call", lambda: (poll_check(2), st_("p3b")))]
            if pin: pins[6*ks-2] = pin
            pins[6*ks-1] = [("wait", [], [f"a{gk}" if ks < 20 else f"x{p}"])]
            for t in range(2):
                for j in range(3):
                    d = vr(ACC + 24*(p & 1) + 12*t + 4*j, 4)
                    if ks < 20: mf.append(f"v_mfma_f32_16x16x32_bf16 {d}, {ar(12*ks+4*j, 4)}, {vr(AR+8*(gk % 3)+4*t, 4)}, {d if ks else 0}")
                    else: mf.append(f"v_mfma_f32_16x16x16_bf16 {d}, {vr(EXW+2*j, 2)}, {vr(EXA+2*t, 2)}, {d}")
            if ks == 18: rq += [(6*ks, 6*ks+2+t, exa_reads(p)[t]) for t in range(2)]
            if ks < 20 and gk + 2 < 80: rq += [(6*ks, 6*ks+3+t, aread(gk+2, t)) for t in range(2)]
        wds = [wd_load(n) for n in range(wdn[p], wdn[p+1])]
        work = [b[0] for b in (stats_ops() if p == 0 else gelu_ops(p-1) + con_reads(p))]
        if p == 0:
            rq += [(6*19+2, 6*20, b[0]) for b in con_reads(0)]
            pins[20] = [work.pop(0)]
            left, rest = sc.run(mf[:21], pins, [rq[:8], []], [])
            pins = {g-21: v for g, v in pins.items() if g >= 21}
            rq = [(0, 1, x) for x in left] + [(a-21, b-21, x) for a, b, x in rq[8:]]
            left, rest = sc.run(mf[21:], pins, [rq, spread(dmap(1), 0, DM1) + spread(wds, DM1 + 20, 104)], work)
        elif p < 3:
            left, rest = sc.run(mf, pins, [rq, spread(dmap(p+1), 0, DM2) + spread(wds, max(DM2 + 5, 6*SIGK if p == 2 else 0), 124)], work)
        else:
            lq = spread(wds, 6, 6*P2C) + spread([dload(0, ks) for ks in range(12)], 6*P2C, 6*P2C + 54)
            pq = [(6*P2I, 6*P2I+3, poll_issue(2))] + ([] if P3T else [(6*P3I, 6*P3I+3, poll_issue(3))])
            uq = [(84, 88, ("wait", ["pk4", "pk35"], []))] + [(92 + 2*i, 1000, unpark(n)) for i, n in enumerate(n for n in range(60) if parked(n))]
            left, rest = sc.run(mf, pins, [rq, lq, pq, uq], work)
        sc.flush(rest + left)
        report(f"pair{p}", n0)
        st_(f"p{p}")
    k(f"""
    s_mul_i32 s36, s29, 20480
    v_add_u32 v{VCA}, s36, v{VST}
    v_add_u32 v{VCB}, 40960, v{VB2}
    s_mul_i32 s36, s29, 5120
    s_add_u32 s36, s36, {2*SLOT}
    v_add_u32 v{VST}, s36, v{VST}
    """)
    tail = [b[0] for b in gelu_ops(3, packed=True)]
    sc.flush(tail[:P3T])
    if P3T: emit(poll_issue(3))
    sc.flush(tail[P3T:])
    st_("tail")
    def rwrite(t): return [("lg", "rw", f"ds_write_b128 v{(VB2, VCB)[t >> 1]}, {vr(DA+20*t+4*j, 4)} offset:{20480*(t & 1) + 1024*j}") for j in range(5)]
    xw = [("lg", "xw", f"ds_write_b128 v{VCB}, {vr(X2+4*j, 4)} offset:{40960 + 1024*j}") for j in range(5)]
    xb = [("lg", "gb", f"ds_read_b128 {vr(X2+4*j, 4)}, v{VST} offset:{1024*j}") for j in range(5)]
    poll_check(3)
    st_("poll3")
    mf, pins = [], {}
    ev = {}
    for g, it in ((S4K, [("wait", ["h2"], []), ("call", lambda: (signal(4), st_("sig4")))]), (S5K, [("wait", ["h3"], []), ("call", lambda: (signal(5), st_("sig5")))]),
                  (P4C, [("call", lambda: (poll_check(4), st_("poll4")))]), (P5C, [("call", lambda: (poll_check(5), st_("poll5")))])):
        ev.setdefault(g, []).extend(it)
    for t in range(4):
        for ks in range(12):
            g = 12*t + ks
            pins[5*g-1] = [("wait", [f"d{t}_{ks}"] + [f"wd{n}" for n in range(5*ks, 5*ks+5) if not parked(n)], ["upk"])]
            if ks == 0 and t and f"t{t-1}" in STAMPS and common.DIAG: ev.setdefault(g, []).append(("call", lambda t=t: st_(f"t{t-1}")))
            if g in ev: pins[5*g-2] = ev[g]
            for j in range(5):
                d = vr(DA + 20*t + 4*j, 4)
                mf.append(f"v_mfma_f32_16x16x32_bf16 {d}, {wd_reg(5*ks+j)}, {ar(AD[t & 1]+4*ks, 4)}, {d if ks else 0}")
    lq = []
    for t, c in ((1, 0), (2, P4C), (3, P5C)):
        for ks in range(12):
            a = max(5*c + LP*ks, 5*(12*(t-2) + ks) + 4)
            lq += [(a, 1000, x) for x in dload(t, ks)]
    pq = [(5*P4I, 5*P4I+1, poll_issue(4)), (5*P5I, 5*P5I+1, poll_issue(5))]
    now = lambda items, a: [(a, 1000, x) for x in items]
    wq = now(xw, 30) + now(rwrite(0), 66) + now([b[0] for b in vec_reads(GB, 2, "gb")] + xb, 90) + now(rwrite(1), 126) + now(rwrite(2), 186)
    left, _ = sc.run(mf, pins, [pq, lq, wq], [])
    st_("t3")
    sc.flush(left + rwrite(3))
    emit(("wait", [], ["rw", "gb"])); k("s_barrier")
    st_("red")
    R = WD0
    for s in range(4):
        for j in range(5): emit(("lg", f"r{s}", f"ds_read_b128 {vr(R+20*s+4*j, 4)}, v{VCA} offset:{5120*s + 1024*j}"))
    for s in range(4):
        emit(("wait", [], [f"r{s}"]))
        for j in range(10): k(f"v_pk_fma_f32 {P(X2,j)}, {P(R+20*s,j)}, {P(GB,j)}, {P(X2,j)}")
    for pr in range(2):
        for j in range(4*pr, 4*pr+4): k(f"v_cvt_pk_bf16_f32 v{DA+j}, v{X2+2*j}, v{X2+2*j+1}")
        k(f"buffer_store_dwordx4 v[{DA+4*pr}:{DA+4*pr+3}], v{VX}, s[24:27], 0 offen offset:{64*pr}")
    for j in (8, 9): k(f"v_cvt_pk_bf16_f32 v{DA+j}, v{X2+2*j}, v{X2+2*j+1}")
    k(f"buffer_store_dwordx2 v[{DA+8}:{DA+9}], v{VX4}, s[24:27], 0 offen offset:128")
    stamp_flush(k, 2 - env('FUSED', 1), sn[0]+2, 20)
    k(f"{Lend}:\ns_endpgm")
    for x in slow: k(x)
    c = S[2]; QF = Q[0]; f = FR
    for i in range(2):
        L1, L2 = k.label("p1"), k.label("p2")
        k(f"""
        {Lfb[i]}:
        s_lshr_b32 s36, s29, 1
        s_mul_i32 s36, s36, {2*QT}
        s_add_u32 s36, s36, s10
        buffer_load_dwordx4 {vr(QF, 4)}, v{VL}, {WS}, s36 offen offset:{QT*i}
        buffer_load_dwordx2 {vr(QF+4, 2)}, v27, {WS}, s36 offen offset:{QT*i + 1024}
        v_mov_b32 v22, 0xff800000
        s_add_u32 s16, s6, s11
        s_add_u32 s36, s16, {64*KVT}
        s_waitcnt vmcnt(0)
        v_cndmask_b32 v{QF+4}, 0, v{QF+4}, s[56:57]
        v_cndmask_b32 v{QF+5}, 0, v{QF+5}, s[56:57]
        {L1}:
        {kvload(0)[0][2]}
        {kvload(0)[1][2]}
        s_waitcnt vmcnt(0)
        {qa(c, f, QF)}
        {qb(c, f+12, QF)}
        s_nop 11
        """)
        for x in rowmax(c, 22, False): k(x)
        k(f"""
        s_add_u32 s16, s16, {KVT}
        s_cmp_lt_u32 s16, s36
        s_cbranch_scc1 {L1}
        v_mov_b32 v23, v22
        s_nop 1
        v_permlane32_swap_b32 v23, v22
        v_max_f32 v22, v23, v22
        v_sub_f32 v23, 0, v22
        v_and_b32 v24, s45, v23
        v_sub_f32 v23, v23, v24
        v_and_b32 v25, s45, v23
        v_sub_f32 v23, v23, v25
        v_lshrrev_b32 v24, 16, v24
        v_or_b32 v24, v24, v25
        v_lshrrev_b32 v23, 16, v23
        v_cndmask_b32 v{QF+4}, v24, v{QF+4}, s[56:57]
        v_cndmask_b32 v{QF+5}, v23, v{QF+5}, s[56:57]
        """)
        for j in range(16): k(f"v_mov_b32 v{F[i]+j}, 0")
        k(f"""
        s_add_u32 s16, s6, s11
        {L2}:
        {kvload(0)[0][2]}
        {kvload(0)[1][2]}
        {kvload(0)[2][2]}
        {kvload(0)[3][2]}
        s_waitcnt vmcnt(0)
        {qa(c, f, QF)}
        {qb(c, f+12, QF)}
        s_nop 11
        """)
        for j in range(16): k(f"v_exp_f32 v{c+j}, v{c+j}")
        k(f"""
        s_nop 1
        {pv(F[i], f+4, c)}
        {pv(F[i], f+8, c+8)}
        s_add_u32 s16, s16, {KVT}
        s_cmp_lt_u32 s16, s36
        s_cbranch_scc1 {L2}
        s_nop 11
        v_mov_b32 v{18+2*i}, v{F[i]+8}
        v_mov_b32 v{19+2*i}, v{F[i]+8}
        s_nop 1
        v_permlane32_swap_b32 v{18+2*i}, v{19+2*i}
        s_branch {Lrt[i]}
        """)
    return k, dict(grid=256, block=256, lds=LDS, vgpr=512, accum=256, sgpr=102)
```

```python
from asm import *
NAME = "adaLN_cond__softmax_full_mha__glu_gated_geglu__prompt"
A_X, A_WQKV, A_WO, A_BX, A_WG, A_WU, A_WD, A_C, A_WMOD, A_OUT, A_DBG, A_WS = [8*i for i in range(12)]
WS_MOD  = 0
WS_MODH = 0x4000
WS_FLAG = 0x40000
WS_PART = 0x8000
WS_FLAGF = 0x50000
WS_STAT = 0x10000
WS_XH   = 0x80000
WS_Q    = 0x300000
WS_KV   = 0x580000
WS_O    = 0xAC0000
WS_X2   = 0xD40000
WS_Y2   = 0xFC0000
WS_HH   = 0x1240000
WS_PWO  = 0x1840000
WS_PWD  = WS_PWO + 640*640*2
WS_PWG  = WS_PWD + 1536*640*2
WS_TS   = 0x1F00000
WS_END  = 0x2000000
import os
WS_OFF = int(os.environ.get('WSOFF', 0)) << 20
KVT = 2688
QT = 1280
LOG2E = 1.4426950408889634
import struct
def f32(x): return "0x%08x" % struct.unpack("<I", struct.pack("<f", x))[0]

def srd(k, d, base, size):
    k(f"s_mov_b32 s{d}, s{base}\ns_mov_b32 s{d+1}, s{base+1}\ns_mov_b32 s{d+2}, {hex(size)}\ns_mov_b32 s{d+3}, 0x20000")

def ws_base(k, p, t):
    if WS_OFF: k(f"s_add_u32 s{p}, s{p}, {hex(WS_OFF)}\ns_addc_u32 s{p+1}, s{p+1}, 0")
    k(f"s_add_u32 s{t}, s{p}, {hex(WS_END)}\ns_cselect_b32 s{t}, {hex(WS_END)}, 0\ns_add_u32 s{p}, s{p}, s{t}\ns_addc_u32 s{p+1}, s{p+1}, 0")

def kernel_text(k, vgpr, sgpr=96, accum=None):
    if DIAG: sgpr = 102
    if accum is None: accum = min(256, (vgpr + 3)//4*4)
    bad = check(k.L, k.name)
    assert bad == 0, f"{bad} hazards in {k.name}"
    code = f""".text
.globl {k.name}_kernel
.p2align 8
.type {k.name}_kernel,@function
{k.name}_kernel:
{k.text()}
"""
    kd = f""".p2align 6
.amdhsa_kernel {k.name}_kernel
  .amdhsa_next_free_vgpr {vgpr}
  .amdhsa_next_free_sgpr {sgpr}
  .amdhsa_accum_offset {accum}
  .amdhsa_group_segment_fixed_size 0
  .amdhsa_kernarg_size 96
  .amdhsa_user_sgpr_count 2
  .amdhsa_user_sgpr_kernarg_segment_ptr 1
  .amdhsa_system_sgpr_workgroup_id_x 1
.end_amdhsa_kernel
"""
    return code, kd

def code_prefetch(k, target, nkb, sp, va, vd):
    L = k.label("pc")
    k(f"""
    s_getpc_b64 s[{sp}:{sp+1}]
    {L}:
    s_add_u32 s{sp}, s{sp}, {target}-{L}
    s_addc_u32 s{sp+1}, s{sp+1}, 0
    v_and_b32 v{va}, 63, v0
    v_lshlrev_b32 v{va}, 7, v{va}
    """)
    for i in range((nkb+7)//8):
        k(f"v_min_u32 v{va}, L_text_end-{target}-4, v{va}")
        k(f"global_load_dword v{vd}, v{va}, s[{sp}:{sp+1}]")
        if i < (nkb+7)//8 - 1: k(f"v_add_u32 v{va}, 8192, v{va}")

DIAG = False
def stamp(k, i):
    if DIAG: k(f"s_memrealtime s[98:99]\ns_memtime s[100:101]\ns_waitcnt lgkmcnt(0)\ns_mov_b32 s{80+i}, s98\ns_mov_b32 s{64+i}, s100")
def stamp_flush(k, kid, n, ws_srd):
    if not DIAG: return
    stamp(k, n-1)
    k("s_mov_b64 exec, 1")
    k(f"s_lshl_b32 s95, s2, 3\ns_add_u32 s95, s95, s79\ns_lshl_b32 s95, s95, 7\ns_add_u32 s95, s95, {WS_TS + kid*0x40000}")
    k("v_mov_b32 v1, 0")
    for i in range(n):
        k(f"v_mov_b32 v2, s{80+i}\nbuffer_store_dword v2, v1, s[{ws_srd}:{ws_srd+3}], s95 offen offset:{4*i}")
        k(f"v_mov_b32 v2, s{64+i}\nbuffer_store_dword v2, v1, s[{ws_srd}:{ws_srd+3}], s95 offen offset:{64+4*i}")
def stamp_init(k):
    if DIAG:
        stamp(k, 0)
        k("v_lshrrev_b32 v1, 6, v0\ns_nop 0\nv_readfirstlane_b32 s79, v1")
```

```python
from common import *
import common, os
from sched import Sched, spread, simulate
from back import Track, env
from k1 import dpp_sum16
from pack import pack

FUSED = 1; MAPF = env("MAPF", 2); GOC = env("GOC", 2); SGC = env("SGC", 8); CPF = env("CPF", 1); ROT = env("ROT", 1); DLYW = env("DLYW", 0); RDY = env("RDY", 0); HD = env("HD", 20); NW0 = env("NW0", 4); STSC = " sc1" if env("STSC", 1) else ""
def gemv(k, emit, half, VP, R0):
    P = lambda r, j: f"v[{r+2*j}:{r+2*j+1}]"
    WS = "s[20:23]"
    ncol = 64; nr = 10 if half else 20
    sh = 3
    AV, GA, TM, WR = R0, R0+20, R0+28, R0+36
    CR, T2 = WR+80, WR+92
    per = 640//ncol
    k(f"""
    s_min_u32 s39, s38, {3840//ncol - 1}
    s_mul_i32 s39, s39, {2*ncol}
    s_add_u32 s14, s14, s39
    s_addc_u32 s15, s15, 0
    v_lshrrev_b32 v19, {sh}, v0
    {"v_lshl_add_u32 v19, s60, 5, v19" if half else ""}
    v_mul_u32_u24 v20, {2*nr}, v19
    s_mov_b32 s40, {nr*7680}
    v_mul_lo_u32 v21, s40, v19
    v_lshl_add_u32 v21, v{VP}, 2, v21
    """)
    emit(("vm", "c", f"global_load_dwordx4 {vr(CR, 4)}, v20, s[12:13]"))
    if nr == 20:
        emit(("vm", "c", f"global_load_dwordx4 {vr(CR+4, 4)}, v20, s[12:13] offset:16"))
        emit(("vm", "c", f"global_load_dwordx2 {vr(CR+8, 2)}, v20, s[12:13] offset:32"))
    else: emit(("vm", "c", f"global_load_dword v{CR+4}, v20, s[12:13] offset:16"))
    yield
    def wload(i):
        emit(("vm", f"g{i}", f"global_load_dwordx4 {vr(WR+4*i, 4)}, v21, s[14:15]"))
        if i < nr-1: k("v_add_u32 v21, 7680, v21")
    if nr == 10:
        for i in range(10): wload(i)
        yield
    emit(("wait", ["c"], []))
    h = nr//2
    for j in range(h): k(f"v_lshlrev_b32 v{AV+2*j}, 16, v{CR+j}\nv_and_b32 v{AV+2*j+1}, s45, v{CR+j}")
    for i in range(nr): k(f"v_mul_f32 v{T2+i}, {f32(-LOG2E)}, v{AV+i}")
    for i in range(nr): k(f"v_exp_f32 v{T2+i}, v{T2+i}")
    for j in range(h): k(f"v_pk_add_f32 {P(T2,j)}, {P(T2,j)}, 1.0 op_sel_hi:[1,0]")
    for i in range(nr): k(f"v_rcp_f32 v{T2+i}, v{T2+i}")
    for j in range(h): k(f"v_pk_mul_f32 {P(T2,j)}, {P(T2,j)}, {P(AV,j)}")
    for j in range(h): k(f"v_cvt_pk_bf16_f32 v{CR+j}, v{T2+2*j}, v{T2+2*j+1}")
    for j in range(h): k(f"v_lshlrev_b32 v{AV+2*j}, 16, v{CR+j}\nv_and_b32 v{AV+2*j+1}, s45, v{CR+j}")
    yield
    if nr == 20:
        for i in range(20): wload(i)
        yield
    for i in range(nr):
        emit(("wait", [f"g{i}"], []))
        r = WR + 4*i
        for j in range(4): k(f"v_lshlrev_b32 v{TM+2*j}, 16, v{r+j}\nv_and_b32 v{TM+2*j+1}, s45, v{r+j}")
        e = i & 1; src = P(AV + i - e, 0)
        for j in range(4):
            if i == 0: k(f"v_pk_mul_f32 {P(GA,j)}, {P(TM,j)}, {src} op_sel:[0,0] op_sel_hi:[1,0]")
            else: k(f"v_pk_fma_f32 {P(GA,j)}, {P(TM,j)}, {src}, {P(GA,j)} op_sel:[0,{e},0] op_sel_hi:[1,{e},1]")
    k(f"""
    v_lshrrev_b32 v19, 4, v0
    v_lshlrev_b32 v19, 8, v19
    v_lshl_add_u32 v19, v{VP}, 3, v19
    """)
    dpp_sum16(k, list(range(GA, GA+8)), steps=(8,) if ncol == 64 else (8, 4))
    k(f"""
    ds_write_b128 v19, {vr(GA, 4)} offset:49152
    ds_write_b128 v19, {vr(GA+4, 4)} offset:{49152+16}
    v_and_b32 v19, {ncol-1}, v17
    v_lshlrev_b32 v19, 2, v19
    s_waitcnt lgkmcnt(0)
    s_barrier
    """)
    for i in range(8): k(f"ds_read2st64_b32 {P(T2,i)}, v19 offset0:{192+2*i} offset1:{192+2*i+1}")
    if half:
        k(f"""
        s_mul_i32 s40, s60, 5120
        s_lshl_b32 s41, s38, 8
        s_add_u32 s40, s40, s41
        s_add_u32 s40, s40, {WS_PART}
        s_cmp_eq_u32 s29, 0
        s_cselect_b32 s40, s40, 0x40000000
        """)
        yield
        k("s_waitcnt lgkmcnt(0)")
        for i in range(1, 8): k(f"v_pk_add_f32 {P(T2,0)}, {P(T2,0)}, {P(T2,i)}")
        k(f"v_add_f32 v{T2}, v{T2}, v{T2+1}")
        emit(("vm", "pay", f"buffer_store_dword v{T2}, v19, {WS}, s40 offen sc1"))
        yield
    k(f"""
    s_sub_u32 s41, s38, {per}
    s_cmp_lt_u32 s41, {per}
    s_cselect_b32 s42, 1.0, 0
    s_sub_u32 s41, s38, {4*per}
    s_cmp_lt_u32 s41, {per}
    s_cselect_b32 s42, 1.0, s42
    s_mul_i32 s40, s38, {4*ncol}
    s_mul_i32 s41, s38, {2*ncol}
    s_add_u32 s41, s41, {WS_MODH}
    s_cmp_eq_u32 s29, 0
    s_cselect_b32 s40, s40, 0x40000000
    s_cselect_b32 s41, s41, 0x40000000
    v_lshrrev_b32 v20, 1, v19
    s_waitcnt lgkmcnt(0)
    """)
    for i in range(1, 8): k(f"v_pk_add_f32 {P(T2,0)}, {P(T2,0)}, {P(T2,i)}")
    k(f"""
    v_add_f32 v{T2}, v{T2}, v{T2+1}
    v_cvt_pk_bf16_f32 v{T2}, v{T2}, v{T2}
    v_and_b32 v{T2}, s45, v{T2}
    v_add_f32 v{T2}, s42, v{T2}
    v_cvt_pk_bf16_f32 v{T2}, v{T2}, v{T2}
    v_and_b32 v{T2}, s45, v{T2}
    """)
    emit(("vm", "pay", f"buffer_store_short_d16_hi v{T2}, v20, {WS}, s41 offen sc1"))
    emit(("vm", "pf", f"buffer_store_dword v{T2}, v19, {WS}, s40 offen offset:{WS_MOD} sc1"))
    yield

def front():
    k = K("front")
    Lend, Lh, Lv = k.label("end"), k.label("helper"), k.label("vtype")
    WS = "s[20:23]"
    P = lambda r, j: f"v[{r+2*j}:{r+2*j+1}]"
    VL, VD, VT, VFL, VSA = 1, 2, 7, 12, 13
    VLA, VO1, VO2 = 2, 5, 6
    ACC, OUT, AR = 24, 64, 84
    WB = 61440; STA = 49152
    wreg = lambda n: ar(4*n, 4) if n < 64 else vr(112 + 4*(n-64), 4)
    wreg2 = lambda n, jj: ar(4*n+2*jj, 2) if n < 64 else vr(112 + 4*(n-64) + 2*jj, 2)
    if MAPF == 8: mapping = """
    s_and_b32 s28, s2, 7
    s_bfe_u32 s30, s2, 0x10003
    s_lshl1_add_u32 s28, s28, s30
    s_lshr_b32 s30, s2, 4
    s_add_u32 s30, s30, 12
    s_and_b32 s30, s30, 15
    """
    else: mapping = """
    s_and_b32 s28, s2, 1
    s_bfe_u32 s30, s2, 0x30003
    s_lshl3_add_u32 s28, s28, s30
    s_lshr_b32 s30, s2, 6
    s_add_u32 s30, s30, 3
    s_and_b32 s30, s30, 3
    s_bfe_u32 s3, s2, 0x20001
    s_lshl2_add_u32 s30, s30, s3
    """
    stamp_init(k)
    Lp = k.label("pc")
    k(f"""
    s_cmp_ge_u32 s2, 256
    s_cbranch_scc1 {Lend}
    s_load_dwordx2 s[6:7], s[0:1], {A_WS}
    s_load_dwordx4 s[8:11], s[0:1], {A_X}          ; x, wqkv
    s_load_dwordx4 s[12:15], s[0:1], {A_C}         ; c, w_mod
    s_load_dwordx2 s[24:25], s[0:1], {A_DBG}
    """)
    if CPF: k(f"""
    s_getpc_b64 s[4:5]
    {Lp}:
    s_and_b32 s3, s2, 0xf8
    v_lshrrev_b32 v1, 5, v0
    v_add_lshl_u32 v1, s3, v1, 7
    global_load_dword v255, v1, s[4:5]
    """)
    k(f"""
    {mapping}
    v_lshrrev_b32 v16, 6, v0
    v_and_b32 v17, 63, v0
    v_readfirstlane_b32 s29, v16       ; wave
    s_cmp_ge_u32 s30, 12
    s_cbranch_scc1 {Lh}
    v_lshrrev_b32 v18, 4, v17          ; q
    s_and_b32 s38, s30, 7
    s_lshl3_add_u32 s38, s28, s38
    s_mul_i32 s38, s38, {16*1280}
    s_mul_i32 s39, s29, 320
    s_add_u32 s38, s38, s39
    v_and_b32 v19, 15, v17
    v_mul_u32_u24 v20, 1280, v19
    v_lshl_add_u32 v20, v18, 4, v20
    v_add_u32 v20, s38, v20
    s_lshr_b32 s31, s30, 2             ; 0 = Q, 1 = K, 2 = V
    s_cmp_eq_u32 s31, 2
    s_waitcnt lgkmcnt(0)
    """)
    if DLYW == 1: k("s_waitcnt vmcnt(0)")
    Lnx = k.label("nox")
    k(f"s_cbranch_scc1 {Lnx}")
    for i in range(5): k(f"global_load_dwordx4 {vr(64+4*i, 4)}, v20, s[8:9] offset:{64*i}")
    k(f"""
    {Lnx}:
    s_and_b32 s32, s30, 3
    s_mul_i32 s35, s30, 320
    v_lshlrev_b32 v{VL}, 4, v17
    v_bfe_u32 v19, v17, 2, 2           ; r
    v_and_b32 v20, 3, v17
    v_lshl_add_u32 v21, v16, 4, v19    ; 16w + r
    s_mul_i32 s56, s28, 52
    s_lshr_b32 s56, s56, 8
    s_mul_i32 s56, s56, 5
    s_sub_u32 s56, s28, s56
    s_mul_i32 s56, s56, {ROT}
    s_mul_i32 s57, s56, {128*3840}
    s_add_u32 s35, s35, s57
    s_add_u32 s10, s10, s35
    s_addc_u32 s11, s11, 0
    s_lshl_b32 s57, s56, 1
    s_sub_u32 s57, 10, s57
    s_lshr_b32 s33, s29, 1
    s_and_b32 s34, s29, 1
    s_mul_i32 s36, s29, 5120
    s_add_u32 s36, s36, {WB}
    s_lshl_b32 s37, s28, 11
    s_add_u32 s37, s37, {WS_FLAGF}
    v_and_b32 v{VFL}, 7, v17
    v_lshlrev_b32 v{VFL}, 2, v{VFL}
    v_cmp_eq_u32 vcc, 0, v0
    v_mov_b32 v22, 0x40000000
    s_mov_b32 s45, 0xffff0000
    v_cndmask_b32_e64 v{VSA}, v22, 0, vcc
    """)
    if DLYW == 2: k("s_waitcnt vmcnt(0)")
    for i in range(5):
        k(f"""
        v_add_u32 v22, {4*i}, v18
        v_mul_u32_u24 v23, 13, v22
        v_lshrrev_b32 v23, 6, v23
        v_mul_u32_u24 v24, 5, v23
        v_sub_u32 v22, v22, v24
        v_and_b32 v24, 2, v23
        v_xor_b32 v24, v24, v20
        v_lshl_add_u32 v23, v23, 2, v21
        v_mul_u32_u24 v23, 3840, v23
        v_lshl_add_u32 v23, v22, 6, v23
        s_add_u32 m0, s36, {1024*i}
        v_lshl_add_u32 v{VD+i}, v24, 4, v23
        global_load_lds_dwordx4 v{VD+i}, s[10:11]
        """)
    k(f"s_add_u32 s10, s10, {64*3840}\ns_addc_u32 s11, s11, 0")
    for i in range(5): k(f"s_add_u32 m0, s36, {20480 + 1024*i}\ns_nop 0\nglobal_load_lds_dwordx4 v{VD+i}, s[10:11]")
    k(f"s_cmp_eq_u32 s57, 2\ns_cselect_b32 s58, {640*3840}, 0\ns_add_u32 s10, s10, {64*3840}\ns_addc_u32 s11, s11, 0\ns_sub_u32 s10, s10, s58\ns_subb_u32 s11, s11, 0")
    k(f"""
    v_mul_u32_u24 v22, 2560, v18
    v_lshl_add_u32 v22, v19, 6, v22
    v_add_u32 v22, {WB}, v22
    v_and_b32 v23, 1, v18
    v_lshlrev_b32 v23, 2, v23
    s_mul_i32 s38, s34, 20
    """)
    for t in range(5):
        k(f"v_add3_u32 v24, s38, v20, {5*t}" if t < 4 else "v_mul_u32_u24 v24, 5, v20\nv_add3_u32 v24, s38, v24, 4")
        k(f"""
        v_lshrrev_b32 v25, 3, v24
        v_and_b32 v24, 7, v24
        v_xor_b32 v24, v24, v23
        v_lshl_add_u32 v25, v25, 8, v22
        v_lshl_add_u32 v{VT+t}, v24, 3, v25
        """)
    k("s_mov_b32 s26, 256\ns_mov_b32 s27, 0x20000")
    ws_base(k, 6, 20)
    srd(k, 20, 6, WS_END)
    k(f"s_cmp_eq_u32 s31, 2\ns_cbranch_scc1 {Lv}")
    slow = []
    go = "buffer_load_dword v14, off, s[24:27], 0 sc1"
    def spin(L, Lok, retry, test): return f"""
        {L}:
        s_mov_b32 s49, 0
        {L}b:
        s_add_u32 s49, s49, 1
        {retry}
        s_waitcnt vmcnt(0)
        {test}
        s_cbranch_vccz {Lok}
        s_cmp_lt_u32 s49, 0x10000
        s_cbranch_scc1 {L}b
        s_branch {Lok}
        """
    def path(vt):
        vm, lg = Track(k, "vmcnt", 63), Track(k, "lgkmcnt", 15)
        def emit(x):
            if isinstance(x, str): k(x); return
            if x[0] == "call": x[1]()
            elif x[0] == "vm": k(x[2]); vm.op(x[1])
            elif x[0] == "lg": k(x[2]); lg.op(x[1])
            elif x[0] == "wait":
                p = []
                for tr, tags in ((vm, x[1]), (lg, x[2])):
                    n = tr.n(*tags) if tags else None
                    if n is not None:
                        n = min(n, tr.mx); p.append(f"{tr.name}({n})"); tr.done(n)
                if p: k("s_waitcnt " + " ".join(p))
        sc = Sched(k, emit)
        for tag in ([] if vt else ["x"]*5) + ["w0"]*5 + ["w1"]*5: vm.op(tag)
        sn = [0]
        def st_():
            sn[0] += 1; stamp(k, sn[0])
        def wdma(c):
            L = []
            for i in range(5):
                L += [f"s_add_u32 m0, s36, {(c % 5)*20480 + 1024*i}", ("vm", f"w{c}", f"global_load_lds_dwordx4 v{VD+i}, s[10:11]")]
            return L + [f"s_cmp_eq_u32 s57, {c+1}", f"s_cselect_b32 s58, {640*3840}, 0", f"s_add_u32 s10, s10, {64*3840}", "s_addc_u32 s11, s11, 0",
                        "s_sub_u32 s10, s10, s58", "s_subb_u32 s11, s11, 0"]
        def wchunk(c):
            emit(("wait", [f"w{c}"], [f"t{c-1}"] if c else [])); k("s_barrier")
            R = [("lg", f"t{c}", f"ds_read_b64_tr_b16 {wreg2(5*(2*c+s)+t, jj)}, v{VT+t} offset:{(8*s+jj)*1280}") for s in range(2) for t in range(5) for jj in range(2)]
            D = wdma(c+NW0) if c + NW0 < 10 else []
            for i in range(5):
                for x in D[2*i:2*i+1] + R[4*i:4*i+2] + D[2*i+1:2*i+2] + R[4*i+2:4*i+4]: emit(x)
            for x in D[10:]: emit(x)
            if c < 9:
                for t in range(5): k(f"v_add_u32 v{VT+t}, 20480, v{VT+t}" if c % 5 < 4 else f"v_subrev_u32 v{VT+t}, {4*20480}, v{VT+t}")
        def poll(name, first, retry, issue=True):
            L, Lok = k.label("poll"), k.label("ok")
            if issue: emit(("vm", name, first))
            emit(("wait", [name], []))
            slow.append(spin(L, Lok, retry, "v_cmp_ne_u32 vcc, 1, v14"))
            k(f"v_cmp_ne_u32 vcc, 1, v14\ns_cbranch_vccnz {L}\n{Lok}:")
        if not vt:
            XR, XF, MS, TM = 64, 24, 64, 104
            MB = STA + 1024
            ml = [f"buffer_load_dwordx4 {vr(MS+4*i, 4)}, v15, {WS}, s{(39, 42)[i >> 1]} offen offset:{2560*(i & 1)} sc1" for i in range(4)]
            mt = "\n".join([f"v_max3_u32 v14, v{MS}, v{MS+1}, v{MS+2}"] + [f"v_max3_u32 v14, v14, v{MS+i}, v{MS+i+1}" for i in range(3, 15, 2)] + [f"v_max_u32 v14, v14, v{MS+15}", "v_cmp_eq_u32 vcc, -1, v14"])
            def modloads():
                for x in ml: emit(("vm", "m", x))
            k(f"""
            v_and_b32 v19, 15, v17
            s_lshl_b32 s39, s39, 1
            s_lshl_b32 s43, s39, 1
            s_add_u32 s43, s43, {MB}
            s_add_u32 s39, s39, {WS_PART}
            s_add_u32 s42, s39, 5120
            v_min_u32 v15, 39, v17
            v_lshlrev_b32 v15, 4, v15
            v_lshlrev_b32 v21, 2, v19
            v_add_u32 v22, {STA}, v21
            v_lshrrev_b32 v23, 1, v18
            v_lshl_add_u32 v23, v23, 6, v22
            v_lshl_add_u32 v23, v16, 7, v23
            v_lshlrev_b32 v16, 4, v19
            v_lshl_add_u32 v16, v18, 9, v16
            s_lshr_b32 s40, s30, 1
            s_lshl2_add_u32 s40, s28, s40
            s_mul_i32 s40, s40, 40960
            s_and_b32 s41, s30, 1
            s_lshl_b32 s41, s41, 8
            s_add_u32 s40, s40, s41
            s_mul_i32 s41, s29, 10240
            s_add_u32 s40, s40, s41
            s_add_u32 s40, s40, {WS_XH + 4096}
            s_add_u32 s40, s40, s6
            s_mov_b32 s41, s7
            """)
            emit(("wait", ["x"], []))
            st_()
            for j in range(20): k(f"v_lshlrev_b32 v{XF+2*j}, 16, v{XR+j}\nv_and_b32 v{XF+2*j+1}, s45, v{XR+j}")
            SU, SQ = TM, TM+2
            k(f"v_pk_add_f32 {P(SU,0)}, {P(XF,0)}, {P(XF,1)}\nv_pk_mul_f32 {P(SQ,0)}, {P(XF,0)}, {P(XF,0)}")
            for j in range(1, 20):
                if j > 1: k(f"v_pk_add_f32 {P(SU,0)}, {P(SU,0)}, {P(XF,j)}")
                k(f"v_pk_fma_f32 {P(SQ,0)}, {P(XF,j)}, {P(XF,j)}, {P(SQ,0)}")
            sc.flush([f"v_add_f32 v{SU}, v{SU}, v{SU+1}", f"v_add_f32 v{SU+1}, v{SQ}, v{SQ+1}",
                      f"v_permlane32_swap_b32 v{SU}, v{SU+1}", f"v_add_f32 v{SQ}, v{SU}, v{SU+1}", f"v_add_f32 v{SQ+1}, v{SU}, v{SU+1}",
                      f"v_permlane16_swap_b32 v{SQ}, v{SQ+1}", f"v_add_f32 v{SQ}, v{SQ}, v{SQ+1}",
                      f"ds_write_b32 v23, v{SQ}", "s_waitcnt lgkmcnt(0)", "s_barrier"])
            for i in range(4): k(f"ds_read2_b32 {P(TM,i)}, v22 offset0:{32*i} offset1:{32*i+16}")
            for c in range(2, NW0): sc.flush(wdma(c))
            k("s_waitcnt lgkmcnt(0)")
            for i in range(1, 4): k(f"v_pk_add_f32 {P(TM,0)}, {P(TM,0)}, {P(TM,i)}")
            sc.flush([f"v_mul_f32 v{TM}, {f32(-1.0/640)}, v{TM}", f"v_mul_f32 v{TM+1}, {f32(1.0/640)}, v{TM+1}",
                      f"v_fma_f32 v{TM+1}, -v{TM}, v{TM}, v{TM+1}", f"v_max_f32 v{TM+1}, 0, v{TM+1}", f"v_add_f32 v{TM+1}, {f32(1e-5)}, v{TM+1}",
                      f"v_rsq_f32 v{TM+1}, v{TM+1}", f"v_mul_f32 v{TM}, v{TM}, v{TM+1}"])
            for j in range(20): k(f"v_pk_fma_f32 {P(XF,j)}, {P(XF,j)}, {P(TM,0)}, {P(TM,0)} op_sel:[0,1,0] op_sel_hi:[1,1,0]")
            def modulate():
                L, Lok = k.label("poll"), k.label("ok")
                k(f"v_add_u32 v22, s43, v15\nv_lshlrev_b32 v23, 5, v18\nv_add_u32 v23, s43, v23")
                emit(("wait", ["m"], []))
                slow.append(spin(L, Lok, "\n".join(ml), mt))
                k(f"{mt}\ns_cbranch_vccnz {L}\n{Lok}:")
                st_()
                for j in range(4): k(f"v_pk_add_f32 {P(MS,j)}, {P(MS,j)}, {P(MS+8,j)}")
                for j in range(4): k(f"v_cvt_pk_bf16_f32 v{MS+8+j}, v{MS+2*j}, v{MS+2*j+1}")
                for j in range(4): k(f"v_lshlrev_b32 v{MS+2*j}, 16, v{MS+8+j}\nv_and_b32 v{MS+2*j+1}, s45, v{MS+8+j}")
                emit(("lg", "mw", f"ds_write_b128 v22, {vr(MS, 4)}"))
                for j in range(2, 4): k(f"v_pk_add_f32 {P(MS,j)}, {P(MS,j)}, 1.0 op_sel_hi:[1,0]")
                for j in range(2, 4): k(f"v_cvt_pk_bf16_f32 v{MS+8+j}, v{MS+2*j}, v{MS+2*j+1}")
                for j in range(2, 4): k(f"v_lshlrev_b32 v{MS+2*j}, 16, v{MS+8+j}\nv_and_b32 v{MS+2*j+1}, s45, v{MS+8+j}")
                emit(("lg", "mw", f"ds_write_b128 v22, {vr(MS+4, 4)} offset:640"))
                def rd(i):
                    for n in range(4): emit(("lg", f"mr{i}", f"ds_read_b128 {vr(MS+16*(i % 3)+4*n, 4)}, v23 offset:{640*(n >> 1) + 128*i + 16*(n & 1)}"))
                for i in range(3): rd(i)
                for i in range(5):
                    emit(("wait", [], [f"mr{i}"]))
                    a = MS + 16*(i % 3); x = XF + 8*i
                    for j in range(4): k(f"v_pk_fma_f32 {P(x,j)}, {P(x,j)}, {P(a+8,j)}, {P(a,j)}")
                    if i + 3 < 5: rd(i+3)
                    for j in range(4): k(f"v_cvt_pk_bf16_f32 v{x+j}, v{x+2*j}, v{x+2*j+1}")
                    if i == 4: k("s_add_u32 s40, s40, 8192")
                    emit(("vm", "h", f"global_store_dwordx4 v16, {vr(x, 4)}, s[40:41] offset:{2048*(i & 3) - 4096} sc1"))
            def signal():
                k(f"""
                v_mov_b32 v15, 1
                s_lshl2_add_u32 s38, s30, s37
                s_lshl_b32 s39, s30, 7
                s_add_u32 s39, s39, s37
                """)
                emit(("wait", ["h"], [])); k("s_barrier")
                if MAPF == 8: emit(("vm", "sg", f"buffer_store_dword v15, v{VSA}, {WS}, s38 offen offset:1024"))
                emit(("vm", "sg", f"buffer_store_dword v15, v{VSA}, {WS}, s39 offen sc1"))
            st_()
            for c in range(11):
                if c == RDY: emit(("vm", "go", go))
                if c == GOC:
                    poll("go", go, go, False)
                    st_()
                    modloads(); modulate()
                if c == SGC: signal()
                if c < 10: wchunk(c)
        else:
            for c in range(2, NW0): sc.flush(wdma(c))
            st_(); st_(); st_()
            for c in range(10):
                if c == 6: emit(("vm", "go", go))
                wchunk(c)
            st_()
            poll("go", go, go, False)
        st_()
        hs = "s46"
        hoff = "\n".join(f"s_add_u32 s{58+j}, s56, {j}\ns_cmp_ge_u32 s{58+j}, 5\ns_cselect_b32 s38, 5, 0\ns_sub_u32 s{58+j}, s{58+j}, s38\ns_lshl_b32 s{58+j}, s{58+j}, 13\ns_add_u32 s{58+j}, s{58+j}, s40" for j in range(5))
        k(f"""
        s_lshl_b32 s42, s28, 2
        s_lshl1_add_u32 s42, s33, s42
        s_mul_i32 s40, s42, 40960
        s_lshl_b32 s41, s34, 12
        s_add_u32 s40, s40, s41
        s_add_u32 s40, s40, {WS_XH}
        s_add_u32 s40, s40, s6
        s_mov_b32 s41, s7
        {hoff}
        s_lshl_b32 s44, s29, 12
        v_and_b32 v19, 15, v17
        v_lshlrev_b32 v20, 4, v19
        v_lshl_add_u32 v20, v18, 9, v20
        s_lshl_b32 s38, s33, 13
        v_add_u32 v{VLA}, s38, v20
        v_add_u32 v{VLA+1}, 65536, v{VLA}
        v_add_u32 v{VLA+2}, 131072, v{VLA}
        s_mov_b32 s47, {KVT}
        s_mov_b32 s48, {WS_KV}
        s_cmp_eq_u32 s31, 0
        s_cselect_b32 s47, {QT}, s47
        s_cselect_b32 s48, {WS_Q}, s48
        s_cselect_b32 s50, {f32(20**-0.5*LOG2E)}, 1.0
        s_mov_b32 s51, s50
        s_lshl_b32 s46, s47, 6
        s_mul_i32 s42, s42, s47
        s_add_u32 s48, s48, s42
        s_lshl1_add_u32 s42, s32, s34
        s_lshl_b32 s42, s42, 2
        s_mul_i32 s42, s42, s46
        s_add_u32 s52, s48, s42
        s_add_u32 s53, s52, s46
        s_add_u32 s54, s53, s46
        s_add_u32 s55, s54, s46
        """)
        if not vt: k(f"v_mul_lo_u32 v{VO1}, {hs}, v18\nv_lshl_add_u32 v{VO1}, v19, 3, v{VO1}")
        else: k(f"""
        v_lshrrev_b32 v21, 2, v19
        v_mul_lo_u32 v21, {hs}, v21
        v_lshl_add_u32 v21, v18, 6, v21
        v_and_b32 v22, 3, v19
        v_lshl_add_u32 v{VO1}, v22, 4, v21
        v_lshrrev_b32 v21, 3, v17
        v_mul_lo_u32 v21, {hs}, v21
        v_lshl_add_u32 v21, v{VFL}, 2, v21
        v_lshrrev_b32 v22, 5, v17
        v_lshl_add_u32 v{VO2}, v22, 30, v21
        v_mov_b32 v8, 0x3f803f80
        v_mov_b32 v9, 0x3f803f80
        v_mov_b32 v10, 0x3f803f80
        v_mov_b32 v11, 0x3f803f80
        """)
        if MAPF != 8:
            k(f"v_lshlrev_b32 v15, 5, v{VFL}")
            poll("hp", f"buffer_load_dword v14, v15, {WS}, s37 offen sc1", f"buffer_load_dword v14, v15, {WS}, s37 offen sc1")
        else: poll("hp", f"buffer_load_dword v14, v{VFL}, {WS}, s37 offen offset:1024 sc1",
             f"s_and_b32 s38, s49, 3\ns_cselect_b32 s38, 0, 5\ns_cselect_b32 s39, 1024, 0\ns_add_u32 s39, s39, s37\nv_lshlrev_b32 v14, s38, v{VFL}\nbuffer_load_dword v14, v14, {WS}, s39 offen sc1")
        st_()
        def hdma(u):
            return [[f"s_add_u32 m0, s44, {16384*u}", f"s_add_u32 s40, s{58 + u % 5}, {40960*(u//5)}"]] + \
                   [[("vm", f"u{u}", f"global_load_lds_dwordx4 v{VL}, s[40:41] offset:{1024*i} sc1")] for i in range(4)]
        for u in range(3): sc.flush([x for b in hdma(u) for x in b])
        def aread(gk, t):
            o = 16384*(gk >> 2) + 2048*(gk & 3) + 256*t
            return ("lg", f"a{gk}", f"ds_read_b128 {vr(AR+8*(gk % 3)+4*t, 4)}, v{VLA + (o >> 16)} offset:{o & 0xffff}")
        emit(("wait", ["u0"], ["t9"])); k("s_barrier")
        st_()
        for gk in range(2):
            for t in range(2): emit(aread(gk, t))
        def mfma(gk, t, j):
            d = vr(ACC + 20*t + 4*j, 4); w = wreg(5*(gk % 20) + j); x = vr(AR+8*(gk % 3)+4*t, 4)
            a, b = (x, w) if vt else (w, x)
            return f"v_mfma_f32_16x16x32_bf16 {d}, {a}, {b}, {d if gk % 20 else 0}"
        def conv(t, j, packed):
            a = ACC + 20*t + 4*j; o = OUT + 4*j + 2*t
            L = []
            if not vt: L = [f"v_pk_mul_f32 {P(a,i)}, {P(a,i)}, s[50:51]" for i in range(2)] if packed else [f"v_mul_f32 v{a+i}, s50, v{a+i}" for i in range(4)]
            return L + [f"v_cvt_pk_bf16_f32 v{o+i}, v{a+2*i}, v{a+2*i+1}" for i in range(2)]
        def stores(j, ph):
            o = OUT + 4*j
            sw = [f"v_permlane16_swap_b32 v{o}, v{o+2}", f"v_permlane16_swap_b32 v{o+1}, v{o+3}"]
            if j < 4: return sw + [("vm", "out", f"buffer_store_dwordx4 {vr(o, 4)}, v{VL}, {WS}, s{52+j} offen offset:{1280*vt}{STSC}")]
            if not vt: return [("vm", "out", f"buffer_store_dwordx2 {vr(o+2*t, 2)}, v{VO1}, {WS}, s52 offen offset:{1024 + 128*t}{STSC}") for t in range(2)]
            return sw + [("vm", "out", f"buffer_store_dwordx4 {vr(o, 4)}, v{VO1}, {WS}, s52 offen offset:2304{STSC}"),
                         ("vm", "out", f"buffer_store_dwordx4 v[8:11], v{VO2}, {WS}, s52 offen offset:2560{STSC}")]
        def segment(g0, g1, work):
            mf, pins, rq, lq = [], {}, [], []
            for gk in range(g0, g1):
                n = 10*(gk - g0)
                if gk % 4 == 2 and gk + 2 < 40: pins[n-2] = [("wait", [f"u{(gk+2) >> 2}"], []), "s_barrier"]
                pins[n-1] = [("wait", [], [f"a{gk}"])]
                mf += [mfma(gk, t, j) for t in range(2) for j in range(5)]
                if gk + 2 < 40: rq += [(n, n+3+t, aread(gk+2, t)) for t in range(2)]
            if g0 == 0:
                for u in range(3, 10): lq += spread(hdma(u), HD*(u-3), HD*(u-2))
            left, rest = sc.run(mf, pins, [rq, lq], work)
            sc.flush(rest + left)
        n0 = len(k.L)
        segment(0, 20, [])
        emit(("wait", [], ["a20"]))
        for t in range(2):
            for j in range(5):
                sc.flush(conv(t, j, False) + [mfma(20, t, j)] + ([aread(22, t)] if j == 0 else []))
        segment(21, 40, [x for j in range(5) for x in stores(j, 0)] + [f"s_add_u32 s{52+j}, s{52+j}, s47" for j in range(4)])
        if os.environ.get("REP"): print("  qkv main est", simulate(k.L[n0:]))
        st_()
        for j in range(5):
            sc.flush(conv(0, j, True) + conv(1, j, True) + (stores(j-1, 1) if j else []))
        sc.flush(stores(4, 1))
        stamp_flush(k, 1 - FUSED, sn[0]+2, 20)
        k("s_endpgm")
    path(False)
    k(f"{Lv}:")
    path(True)
    for x in slow: k(x)
    Lng, Lpk = k.label("nogemv"), k.label("pack")
    vm, lg = Track(k, "vmcnt", 63), Track(k, "lgkmcnt", 15)
    def emit(x):
        if isinstance(x, str): k(x)
        elif x[0] == "vm": k(x[2]); vm.op(x[1])
        else:
            n = vm.n(*x[1])
            if n is not None: k(f"s_waitcnt vmcnt({n})"); vm.done(n)
    k(f"""
    {Lh}:
    s_sub_u32 s59, s2, 1
    s_lshr_b32 s38, s59, 1
    s_and_b32 s60, s59, 1
    v_and_b32 v{VFL}, 7, v0
    v_lshlrev_b32 v{VFL}, 2, v{VFL}
    v_cmp_eq_u32 vcc, 0, v0
    v_mov_b32 v22, 0x40000000
    s_mov_b32 s45, 0xffff0000
    v_cndmask_b32_e64 v{VSA}, v22, 0, vcc
    s_mov_b32 s26, 256
    s_mov_b32 s27, 0x20000
    s_waitcnt lgkmcnt(0)
    """)
    ws_base(k, 6, 20)
    srd(k, 20, 6, WS_END)
    k(f"s_cmp_ge_u32 s59, 40\ns_cbranch_scc1 {Lng}")
    gv = gemv(k, emit, True, VFL, 24)
    next(gv); next(gv); next(gv)
    stamp(k, 1)
    emit(("vm", "go", go))
    next(gv)
    L, Lok = k.label("poll"), k.label("ok")
    emit(("wait", ["go"], []))
    k(f"v_cmp_ne_u32 vcc, 1, v14\ns_cbranch_vccnz {L}\n{Lok}:")
    next(gv)
    stamp(k, 2)
    Lnj = k.label("noj")
    k(f"""
    s_branch {Lpk}
    {spin(L, Lok, go, "v_cmp_ne_u32 vcc, 1, v14")}
    {Lng}:
    s_cmp_lg_u32 s2, 0
    s_cbranch_scc1 {Lnj}
    v_lshlrev_b32 v1, 4, v0
    v_mov_b32 v4, -1
    v_mov_b32 v5, -1
    v_mov_b32 v6, -1
    v_mov_b32 v7, -1
    s_mov_b32 s40, {WS_PART}
    s_mov_b32 s41, {WS_PART + 4096}
    s_mov_b32 s42, {WS_PART + 8192}
    buffer_store_dwordx4 v[4:7], v1, {WS}, s40 offen sc1
    buffer_store_dwordx4 v[4:7], v1, {WS}, s41 offen sc1
    buffer_store_dwordx4 v[4:7], v1, {WS}, s42 offen sc1
    v_lshlrev_b32 v2, 5, v{VFL}
    v_add_u32 v3, 1024, v{VFL}
    v_and_b32 v8, 8, v0
    v_cmp_eq_u32 vcc, 0, v8
    v_lshrrev_b32 v8, 4, v0
    s_mov_b32 s40, {WS_FLAGF}
    v_cndmask_b32 v2, v3, v2, vcc
    v_lshl_add_u32 v2, v8, 11, v2
    v_mov_b32 v3, 0
    buffer_store_dword v3, v2, {WS}, s40 offen sc1
    v_mov_b32 v8, 1
    s_waitcnt vmcnt(0)
    s_barrier
    buffer_store_dword v8, v{VSA}, s[24:27], 0 offen sc1
    s_branch {Lpk}
    {Lnj}:
    s_cmp_ge_u32 s59, 60
    s_cbranch_scc1 {Lpk}
    s_sub_u32 s38, s59, 30
    s_lshl_b32 s38, s38, 1
    """)
    vm.__init__(k, "vmcnt", 63)
    gv = gemv(k, emit, False, VFL, 24)
    next(gv); next(gv)
    Ll = k.label("gvl")
    k(f"{Ll}:")
    next(gv); next(gv)
    k(f"""
    v_subrev_u32 v21, {19*7680 - 128}, v21
    s_add_u32 s38, s38, 1
    s_bitcmp1_b32 s38, 0
    s_barrier
    s_cbranch_scc1 {Ll}
    {Lpk}:
    s_barrier
    s_mov_b32 s13, s2
    """)
    stamp(k, 3)
    pack(k, 13, 64, 5)
    k(f"""
    v_mov_b32 v4, 0
    v_lshlrev_b32 v2, 2, v0
    s_lshl_b32 s13, s13, 10
    s_add_u32 s13, s13, {WS_FLAG}
    buffer_store_dword v4, v2, s[20:23], s13 offen
    """)
    code_prefetch(k, "back_kernel", 16, 56, 2, 3)
    for i in range(4, 9): stamp(k, i)
    stamp_flush(k, 1 - FUSED, 10, 20)
    k(f"{Lend}:\ns_endpgm")
    return k, dict(grid=256, block=256, lds=163840, vgpr=512, accum=256, sgpr=102)
```

```python
from common import *
import common
def dpp_sum16(k, regs_, steps=(8, 4, 2, 1)):
    for st in steps:
        if len(regs_) < 3: k("s_nop 1")
        for r in regs_:
            k(f"v_add_f32_dpp v{r}, v{r}, v{r} row_ror:{st} row_mask:0xf bank_mask:0xf")

def gemv_reduce_rows(k, acc, n):
    pass

def k1():
    k = K("prep")
    Lg, Lend = k.label("gemv"), k.label("end")
    stamp_init(k)
    k(f"""
    s_cmp_ge_u32 s2, 248
    s_cbranch_scc1 {Lend}
    s_load_dwordx2 s[4:5], s[0:1], {A_X}
    s_load_dwordx4 s[8:11], s[0:1], {A_C}
    s_load_dwordx2 s[6:7], s[0:1], {A_WS}
    s_cmp_ge_u32 s2, 128
    s_cbranch_scc1 {Lg}
    """)
    k(f"""
    s_and_b32 s12, s2, 1
    s_lshl_b32 s12, s12, 10
    s_lshr_b32 s13, s2, 1
    s_lshl_b32 s13, s13, 4
    s_add_u32 s12, s12, s13
    v_lshrrev_b32 v1, 4, v0
    v_add_u32 v1, s12, v1              ; row
    v_and_b32 v2, 15, v0               ; li
    v_mul_u32_u24 v3, 1280, v1
    v_lshl_add_u32 v3, v2, 4, v3
    s_waitcnt lgkmcnt(0)
    """)
    srd(k, 16, 4, 2048*1280)
    ws_base(k, 6, 20)
    srd(k, 20, 6, WS_END)
    Lz = k.label("noz")
    k(f"""
    s_cmp_lg_u32 s2, 0
    s_cbranch_scc1 {Lz}
    v_mov_b32 v8, 0
    v_lshlrev_b32 v4, 7, v0
    s_mov_b32 s13, {WS_FLAGF}
    v_mov_b32 v9, 0
    v_mov_b32 v10, 0
    v_mov_b32 v11, 0
    buffer_store_dwordx4 v[8:11], v4, s[20:23], s13 offen
    buffer_store_dwordx4 v[8:11], v4, s[20:23], s13 offen offset:16
    s_waitcnt vmcnt(0)
    {Lz}:
    """)
    for i in range(5):
        k(f"buffer_load_dwordx4 v[{8+4*i}:{11+4*i}], v3, s[16:19], 0 offen offset:{256*i}")
    k(f"""
    v_lshrrev_b32 v4, 5, v1
    v_mul_u32_u24 v4, 40, v4
    v_lshrrev_b32 v5, 1, v2
    v_add_u32 v4, v4, v5
    v_lshlrev_b32 v4, 10, v4
    v_and_b32 v5, 1, v2
    v_lshlrev_b32 v5, 5, v5
    v_and_b32 v6, 31, v1
    v_add_u32 v5, v5, v6
    v_lshl_add_u32 v4, v5, 4, v4
    s_mov_b32 s14, 0xffff0000
    """)
    X = 32
    for i in range(5):
        k(f"s_waitcnt vmcnt({4-i})")
        for j in range(4):
            r = 8+4*i+j
            k(f"v_lshlrev_b32 v{X+8*i+2*j}, 16, v{r}\nv_and_b32 v{X+8*i+2*j+1}, s14, v{r}")
    k(f"v_pk_add_f32 v[6:7], v[{X}:{X+1}], v[{X+2}:{X+3}]")
    for j in range(2, 20):
        k(f"v_pk_add_f32 v[6:7], v[6:7], v[{X+2*j}:{X+2*j+1}]")
    k("v_add_f32 v6, v6, v7")
    dpp_sum16(k, [6])
    k(f"v_mul_f32 v6, {f32(-1.0/640)}, v6")
    for j in range(20):
        k(f"v_pk_add_f32 v[{X+2*j}:{X+2*j+1}], v[{X+2*j}:{X+2*j+1}], v[6:7] op_sel_hi:[1,0]")
    k(f"v_pk_mul_f32 v[6:7], v[{X}:{X+1}], v[{X}:{X+1}]")
    for j in range(1, 20):
        k(f"v_pk_fma_f32 v[6:7], v[{X+2*j}:{X+2*j+1}], v[{X+2*j}:{X+2*j+1}], v[6:7]")
    k("v_add_f32 v6, v6, v7")
    dpp_sum16(k, [6])
    k(f"""
    v_mov_b32 v7, {f32(1e-5)}
    v_fmac_f32 v7, {f32(1.0/640)}, v6
    v_rsq_f32 v6, v7
    s_mov_b32 s15, {WS_XH}
    """)
    for i in range(5):
        for j in range(4):
            a = X+8*i+2*j
            k(f"v_pk_mul_f32 v[{a}:{a+1}], v[{a}:{a+1}], v[6:7] op_sel_hi:[1,0]")
        for j in range(4):
            a = X+8*i+2*j
            k(f"v_cvt_pk_bf16_f32 v{8+4*i+j}, v{a}, v{a+1}")
        k(f"buffer_store_dwordx4 v[{8+4*i}:{11+4*i}], v4, s[20:23], s15 offen")
        if i < 4: k("s_add_u32 s15, s15, 8192")
    stamp_flush(k, 0, 2, 20)
    k("s_endpgm")
    k(f"{Lg}:")
    k(f"""
    s_sub_u32 s12, s2, 128
    s_and_b32 s13, s12, 7
    s_mul_i32 s13, s13, 15
    s_lshr_b32 s12, s12, 3
    s_add_u32 s12, s12, s13
    s_lshl_b32 s13, s12, 6
    v_lshrrev_b32 v1, 2, v0
    v_and_b32 v2, 3, v0
    v_mul_u32_u24 v3, 20, v1
    s_mov_b32 s14, 76800
    v_mul_lo_u32 v4, s14, v1
    v_lshl_add_u32 v4, v2, 4, v4
    s_waitcnt lgkmcnt(0)
    """)
    srd(k, 16, 8, 1280)
    srd(k, 24, 10, 640*7680)
    ws_base(k, 6, 20)
    srd(k, 20, 6, WS_END)
    k("buffer_load_dwordx4 v[8:11], v3, s[16:19], 0 offen\nbuffer_load_dword v12, v3, s[16:19], 0 offen offset:16")
    W = 32
    for i in range(10):
        k(f"buffer_load_dwordx4 v[{W+4*i}:{W+3+4*i}], v4, s[24:27], s13 offen")
        if i < 9: k("s_add_u32 s13, s13, 7680")
    k("s_mov_b32 s14, 0xffff0000\ns_waitcnt vmcnt(10)")
    Aa = 16
    for j in range(5):
        k(f"v_lshlrev_b32 v{Aa+2*j}, 16, v{8+j}\nv_and_b32 v{Aa+2*j+1}, s14, v{8+j}")
    for i in range(10):
        k(f"v_mul_f32 v{72+i}, {f32(-LOG2E)}, v{Aa+i}")
    for i in range(10):
        k(f"v_exp_f32 v{72+i}, v{72+i}")
    for i in range(10):
        k(f"v_add_f32 v{72+i}, 1.0, v{72+i}")
    for i in range(10):
        k(f"v_rcp_f32 v{72+i}, v{72+i}")
    for i in range(10):
        k(f"v_mul_f32 v{72+i}, v{72+i}, v{Aa+i}")
    for j in range(5):
        k(f"v_cvt_pk_bf16_f32 v{8+j}, v{72+2*j}, v{73+2*j}")
    for j in range(5):
        k(f"v_lshlrev_b32 v{Aa+2*j}, 16, v{8+j}\nv_and_b32 v{Aa+2*j+1}, s14, v{8+j}")
    ACC = 8
    for i in range(10):
        k(f"s_waitcnt vmcnt({9-i})")
        for j in range(4):
            k(f"v_lshlrev_b32 v{72+2*j}, 16, v{W+4*i+j}\nv_and_b32 v{73+2*j}, s14, v{W+4*i+j}")
        for j in range(8):
            if i == 0: k(f"v_mul_f32 v{ACC+j}, v{72+j}, v{Aa}")
            else: k(f"v_fmac_f32 v{ACC+j}, v{72+j}, v{Aa+i}")
    dpp_sum16(k, list(range(ACC, ACC+8)), steps=(8, 4))
    k(f"""
    v_lshrrev_b32 v1, 4, v0
    v_lshlrev_b32 v1, 7, v1
    v_lshl_add_u32 v1, v2, 5, v1
    ds_write_b128 v1, v[8:11]
    ds_write_b128 v1, v[12:15] offset:16
    v_and_b32 v1, 31, v0
    v_lshlrev_b32 v1, 2, v1
    s_waitcnt lgkmcnt(0)
    s_barrier
    """)
    for i in range(16):
        k(f"ds_read_b32 v{8+i}, v1 offset:{128*i}")
    k(f"""
    s_sub_u32 s13, s12, 20
    s_cmp_lt_u32 s13, 20
    s_cselect_b32 s15, 1.0, 0
    s_sub_u32 s13, s12, 80
    s_cmp_lt_u32 s13, 20
    s_cselect_b32 s15, 1.0, s15
    s_lshl_b32 s12, s12, 7
    s_waitcnt lgkmcnt(0)
    """)
    for i in range(1, 8): k(f"v_pk_add_f32 v[8:9], v[8:9], v[{8+2*i}:{9+2*i}]")
    k(f"""
    v_add_f32 v8, v8, v9
    v_cvt_pk_bf16_f32 v8, v8, v8
    v_and_b32 v8, s14, v8
    v_add_f32 v8, s15, v8
    v_cvt_pk_bf16_f32 v8, v8, v8
    v_and_b32 v8, s14, v8
    v_cmp_gt_u32 vcc, 32, v0
    s_and_saveexec_b64 s[28:29], vcc
    s_cbranch_execz {Lend}
    buffer_store_dword v8, v1, s[20:23], s12 offen offset:{WS_MOD}
    s_lshr_b32 s12, s12, 1
    s_add_u32 s12, s12, {WS_MODH}
    v_lshrrev_b32 v1, 1, v1
    buffer_store_short_d16_hi v8, v1, s[20:23], s12 offen
    """)
    stamp_flush(k, 0, 2, 20)
    k(f"{Lend}:\ns_endpgm")
    return k, dict(grid=248, block=256, lds=2048, vgpr=88)
```

```python
from asm import *
NAME = "adaLN_cond__softmax_full_mha__glu_gated_geglu__prompt"
A_X, A_WQKV, A_WO, A_BX, A_WG, A_WU, A_WD, A_C, A_WMOD, A_OUT, A_DBG, A_WS = [8*i for i in range(12)]
WS_MOD  = 0
WS_MODH = 0x4000
WS_FLAG = 0x40000
WS_PART = 0x8000
WS_FLAGF = 0x50000
WS_STAT = 0x10000
WS_XH   = 0x80000
WS_Q    = 0x300000
WS_KV   = 0x580000
WS_O    = 0xAC0000
WS_X2   = 0xD40000
WS_Y2   = 0xFC0000
WS_HH   = 0x1240000
WS_PWO  = 0x1840000
WS_PWD  = WS_PWO + 640*640*2
WS_PWG  = WS_PWD + 1536*640*2
WS_TS   = 0x1F00000
WS_END  = 0x2000000
import os
WS_OFF = int(os.environ.get('WSOFF', 0)) << 20
KVT = 2688
QT = 1280
LOG2E = 1.4426950408889634
import struct
def f32(x): return "0x%08x" % struct.unpack("<I", struct.pack("<f", x))[0]

def srd(k, d, base, size):
    k(f"s_mov_b32 s{d}, s{base}\ns_mov_b32 s{d+1}, s{base+1}\ns_mov_b32 s{d+2}, {hex(size)}\ns_mov_b32 s{d+3}, 0x20000")

def magic(d, maxv):
    for sh in range(1, 24):
        m = -(-(1 << sh)//d)
        if m < 1 << 24 and m*maxv < 1 << 32 and all((n*m) >> sh == n//d for n in range(maxv+1)): return m, sh
    raise ValueError
def vdiv(dst, src, d, maxv):
    m, sh = magic(d, maxv)
    return f"v_mul_u32_u24 v{dst}, {m}, v{src}\nv_lshrrev_b32 v{dst}, {sh}, v{dst}"

def ws_base(k, p, t):
    if WS_OFF: k(f"s_add_u32 s{p}, s{p}, {hex(WS_OFF)}\ns_addc_u32 s{p+1}, s{p+1}, 0")
    k(f"s_add_u32 s{t}, s{p}, {hex(WS_END)}\ns_cselect_b32 s{t}, {hex(WS_END)}, 0\ns_add_u32 s{p}, s{p}, s{t}\ns_addc_u32 s{p+1}, s{p+1}, 0")

def kernel_text(k, vgpr, sgpr=96, accum=None):
    if DIAG: sgpr = 102
    if accum is None: accum = min(256, (vgpr + 3)//4*4)
    bad = check(k.L, k.name)
    assert bad == 0, f"{bad} hazards in {k.name}"
    code = f""".text
.globl {k.name}_kernel
.p2align 8
.type {k.name}_kernel,@function
{k.name}_kernel:
{k.text()}
"""
    kd = f""".p2align 6
.amdhsa_kernel {k.name}_kernel
  .amdhsa_next_free_vgpr {vgpr}
  .amdhsa_next_free_sgpr {sgpr}
  .amdhsa_accum_offset {accum}
  .amdhsa_group_segment_fixed_size 0
  .amdhsa_kernarg_size 96
  .amdhsa_user_sgpr_count 2
  .amdhsa_user_sgpr_kernarg_segment_ptr 1
  .amdhsa_system_sgpr_workgroup_id_x 1
.end_amdhsa_kernel
"""
    return code, kd

def code_prefetch(k, target, nkb, sp, va, vd):
    L = k.label("pc")
    k(f"""
    s_getpc_b64 s[{sp}:{sp+1}]
    {L}:
    s_add_u32 s{sp}, s{sp}, {target}-{L}
    s_addc_u32 s{sp+1}, s{sp+1}, 0
    v_and_b32 v{va}, 63, v0
    v_lshlrev_b32 v{va}, 7, v{va}
    """)
    for i in range((nkb+7)//8):
        k(f"v_min_u32 v{va}, L_text_end-{target}-4, v{va}")
        k(f"global_load_dword v{vd}, v{va}, s[{sp}:{sp+1}]")
        if i < (nkb+7)//8 - 1: k(f"v_add_u32 v{va}, 8192, v{va}")

DIAG = False
def stamp(k, i):
    if DIAG: k(f"s_memrealtime s[98:99]\ns_memtime s[100:101]\ns_waitcnt lgkmcnt(0)\ns_mov_b32 s{80+i}, s98\ns_mov_b32 s{64+i}, s100")
def stamp_flush(k, kid, n, ws_srd):
    if not DIAG: return
    stamp(k, n-1)
    k("s_mov_b64 exec, 1")
    k(f"s_lshl_b32 s95, s2, 3\ns_add_u32 s95, s95, s79\ns_lshl_b32 s95, s95, 7\ns_add_u32 s95, s95, {WS_TS + kid*0x40000}")
    k("v_mov_b32 v1, 0")
    for i in range(n):
        k(f"v_mov_b32 v2, s{80+i}\nbuffer_store_dword v2, v1, s[{ws_srd}:{ws_srd+3}], s95 offen offset:{4*i}")
        k(f"v_mov_b32 v2, s{64+i}\nbuffer_store_dword v2, v1, s[{ws_srd}:{ws_srd+3}], s95 offen offset:{64+4*i}")
def stamp_init(k):
    if DIAG:
        stamp(k, 0)
        k("v_lshrrev_b32 v1, 6, v0\ns_nop 0\nv_readfirstlane_b32 s79, v1")
```

```python
from common import *
import common, os
from sched import Sched, spread, simulate
from back import Track, env
from k1 import dpp_sum16
from pack import pack, side_job

GOC = env("GOC", 0); SGC = env("SGC", 4); NWA = env("NWA", 2); HD = env("HD", 20); NW0 = env("NW0", 4); STSC = " sc1" if env("STSC", 1) else ""
NP = 5; XT = env("XT", 0); SPL = env("SPL", 6); GOE = env("GOE", 1); PSG = env("PSG", 160); NH0 = env("NH0", 3); W1L = env("W1L", 1)
def gemv(k, emit, nr, VP, R0):
    P = lambda r, j: f"v[{r+2*j}:{r+2*j+1}]"
    AV, GA, TM, T2, CR, WR = R0, R0+20, R0+28, R0+36, R0+56, R0+68
    h = nr//2
    k(f"""
    s_lshl_b32 s39, s38, 7
    v_lshrrev_b32 v19, 3, v0
    v_lshl_add_u32 v19, s41, 5, v19
    v_mul_u32_u24 v20, {2*nr}, v19
    v_mul_u32_u24 v21, {nr*7680}, v19
    v_lshl_add_u32 v21, v{VP}, 2, v21
    s_mov_b32 s40, s39
    """)
    yield
    for o in range(0, h, 4):
        n = min(4, h - o)
        emit(("vm", "c", f"buffer_load_dwordx{n} {vr(CR+o, n)}, v20, s[12:15], 0 offen offset:{4*o}"))
    for i in range(nr):
        emit(("vm", f"g{i}", f"buffer_load_dwordx4 {vr(WR+4*i, 4)}, v21, s[16:19], s40 offen"))
        if i < nr-1: k("s_add_u32 s40, s40, 7680")
    yield
    emit(("wait", ["c"], []))
    for j in range(h): k(f"v_lshlrev_b32 v{AV+2*j}, 16, v{CR+j}\nv_and_b32 v{AV+2*j+1}, s45, v{CR+j}")
    for i in range(nr): k(f"v_mul_f32 v{T2+i}, {f32(-LOG2E)}, v{AV+i}")
    for i in range(nr): k(f"v_exp_f32 v{T2+i}, v{T2+i}")
    for j in range(h): k(f"v_pk_add_f32 {P(T2,j)}, {P(T2,j)}, 1.0 op_sel_hi:[1,0]")
    for i in range(nr): k(f"v_rcp_f32 v{T2+i}, v{T2+i}")
    for j in range(h): k(f"v_pk_mul_f32 {P(T2,j)}, {P(T2,j)}, {P(AV,j)}")
    for j in range(h): k(f"v_cvt_pk_bf16_f32 v{CR+j}, v{T2+2*j}, v{T2+2*j+1}")
    for j in range(h): k(f"v_lshlrev_b32 v{AV+2*j}, 16, v{CR+j}\nv_and_b32 v{AV+2*j+1}, s45, v{CR+j}")
    k(f"""
    v_lshrrev_b32 v19, 4, v0
    v_lshlrev_b32 v19, 8, v19
    v_lshl_add_u32 v19, v{VP}, 3, v19
    v_add_u32 v19, {GLDS}, v19
    v_lshlrev_b32 v20, 2, v17
    v_add_u32 v21, {GLDS}, v20
    """)
    yield
    for i in range(nr):
        emit(("wait", [f"g{i}"], []))
        r = WR + 4*i
        for j in range(4): k(f"v_lshlrev_b32 v{TM+2*j}, 16, v{r+j}\nv_and_b32 v{TM+2*j+1}, s45, v{r+j}")
        e = i & 1; src = P(AV + i - e, 0)
        for j in range(4):
            if i == 0: k(f"v_pk_mul_f32 {P(GA,j)}, {P(TM,j)}, {src} op_sel:[0,0] op_sel_hi:[1,0]")
            else: k(f"v_pk_fma_f32 {P(GA,j)}, {P(TM,j)}, {src}, {P(GA,j)} op_sel:[0,{e},0] op_sel_hi:[1,{e},1]")
    dpp_sum16(k, list(range(GA, GA+8)), steps=(8,))
    k(f"""
    ds_write_b128 v19, {vr(GA, 4)}
    ds_write_b128 v19, {vr(GA+4, 4)} offset:16
    s_waitcnt lgkmcnt(0)
    s_barrier
    """)
    for i in range(8): k(f"ds_read2st64_b32 {P(T2,i)}, v21 offset0:{2*i} offset1:{2*i+1}")
    if nr < 20: k(f"""
    s_mul_i32 s40, s41, 5120
    s_lshl1_add_u32 s40, s39, s40
    s_add_u32 s40, s40, {WS_PART}
    s_cmp_eq_u32 s29, 0
    s_cselect_b32 s40, s40, 0x40000000
    """)
    else: k(f"""
    s_sub_u32 s42, s38, 40
    s_cmp_lt_u32 s42, 10
    s_cselect_b32 s42, 1.0, 0
    s_lshl_b32 s40, s39, 1
    s_add_u32 s43, s39, {WS_MODH}
    s_cmp_eq_u32 s29, 0
    s_cselect_b32 s40, s40, 0x40000000
    s_cselect_b32 s43, s43, 0x40000000
    v_lshrrev_b32 v19, 1, v20
    """)
    yield
    k("s_waitcnt lgkmcnt(0)")
    for i in range(1, 8): k(f"v_pk_add_f32 {P(T2,0)}, {P(T2,0)}, {P(T2,i)}")
    k(f"v_add_f32 v{T2}, v{T2}, v{T2+1}")
    if nr == 20:
        k(f"""
        v_cvt_pk_bf16_f32 v{T2}, v{T2}, v{T2}
        v_and_b32 v{T2}, s45, v{T2}
        v_add_f32 v{T2}, s42, v{T2}
        v_cvt_pk_bf16_f32 v{T2}, v{T2}, v{T2}
        v_and_b32 v{T2}, s45, v{T2}
        """)
        emit(("vm", "pay", f"buffer_store_short_d16_hi v{T2}, v19, s[20:23], s43 offen"))
    emit(("vm", "pay", f"buffer_store_dword v{T2}, v20, s[20:23], s40 offen" + (" sc1" if nr < 20 else "")))
    yield

GLDS = 159744
def simple_emit(k):
    vm = Track(k, "vmcnt", 63)
    def emit(x):
        if isinstance(x, str): k(x)
        elif x[0] == "vm": k(x[2]); vm.op(x[1])
        else:
            n = vm.n(*x[1])
            if n is not None: k(f"s_waitcnt vmcnt({min(n, 63)})"); vm.done(min(n, 63))
    return emit, vm

def front():
    k = K("front")
    Lend, Lh, Lv, Lnu, Lj, Lrole, Lqk, Lw = [k.label(x) for x in ("end", "helper", "vtype", "nounit", "janitor", "role", "qk", "w")]
    WS = "s[20:23]"
    P = lambda r, j: f"v[{r+2*j}:{r+2*j+1}]"
    VL, VD, VT, VFL, VSA = 1, 2, 7, 12, 13
    VLA, VO1, VO2 = 2, 5, 6
    ACC, OUT, AR = 24, 64, 84
    WB = 61440; STA = 49152
    wreg = lambda n: ar(4*n, 4) if n < 64 else vr(112 + 4*(n-64), 4)
    wreg2 = lambda n, jj: ar(4*n+2*jj, 2) if n < 64 else vr(112 + 4*(n-64) + 2*jj, 2)
    slow = []
    go = f"buffer_load_dword v14, v{VSA}, s[24:27], 0 offen sc1"
    def spin(L, Lok, retry, test): return f"""
        {L}:
        s_mov_b32 s49, 0
        {L}b:
        s_add_u32 s49, s49, 1
        {retry}
        s_waitcnt vmcnt(0)
        {test}
        s_cbranch_vccz {Lok}
        s_cmp_lt_u32 s49, 0x10000
        s_cbranch_scc1 {L}b
        s_branch {Lok}
        """
    def setup():
        k("s_waitcnt lgkmcnt(0)")
        ws_base(k, 6, 20)
        k("s_mov_b32 s20, s6\ns_mov_b32 s21, s7")
    stamp_init(k)
    Lp = k.label("pc")
    mu, sh = magic(NP, 20*NP)
    m3, s3_ = magic(3, 95)
    xt = f"""
    s_lshr_b32 s38, s59, 3
    s_lshl2_add_u32 s38, s38, s29
    s_mul_i32 s39, s38, {m3}
    s_lshr_b32 s39, s39, {s3_}         ; segment
    s_mul_i32 s40, s39, 3
    s_sub_u32 s38, s38, s40
    s_mul_i32 s38, s38, 13
    s_lshr_b32 s40, s39, 2
    s_and_b32 s41, s2, 7
    s_lshl3_add_u32 s40, s40, s41      ; helper
    s_and_b32 s39, s39, 3
    s_lshl2_add_u32 s39, s40, s39
    s_mul_i32 s39, s39, 80
    s_add_u32 s38, s38, s39
    s_add_u32 s38, s38, 40
    v_min_u32 v6, 13, v17
    v_add_lshl_u32 v6, s38, v6, 7
    s_mov_b32 s10, {2048*1280}
    s_mov_b32 s11, 0x20000
    """ if XT else ""
    xtl = "buffer_load_dword v255, v6, s[8:11], 0 offen" if XT else ""
    k(f"""
    s_cmp_ge_u32 s2, 256
    s_cbranch_scc1 {Lend}
    s_load_dwordx2 s[12:13], s[0:1], {A_C}
    s_load_dwordx2 s[16:17], s[0:1], {A_WMOD}
    s_load_dwordx2 s[6:7], s[0:1], {A_WS}
    s_load_dwordx2 s[8:9], s[0:1], {A_X}
    s_load_dwordx2 s[4:5], s[0:1], {A_WQKV}
    s_load_dwordx2 s[24:25], s[0:1], {A_DBG}
    s_getpc_b64 s[46:47]
    {Lp}:
    s_and_b32 s3, s2, 0xf8
    v_lshrrev_b32 v1, 5, v0
    v_add_lshl_u32 v1, s3, v1, 7
    global_load_dword v255, v1, s[46:47]
    v_lshrrev_b32 v16, 6, v0
    v_and_b32 v17, 63, v0
    v_readfirstlane_b32 s29, v16       ; wave
    s_mov_b32 s22, {hex(WS_END)}
    s_mov_b32 s23, 0x20000
    s_mov_b32 s26, 256
    s_mov_b32 s27, 0x20000
    s_mov_b32 s45, 0xffff0000
    v_and_b32 v{VFL}, 7, v17
    v_lshlrev_b32 v{VFL}, 2, v{VFL}
    v_and_b32 v{VSA}, 1, v17
    v_lshlrev_b32 v{VSA}, 7, v{VSA}
    s_mov_b32 s14, 1280
    s_mov_b32 s15, 0x20000
    s_mov_b32 s18, {640*7680}
    s_mov_b32 s19, 0x20000
    s_sub_u32 s59, s2, 64
    s_cbranch_scc1 {Lh}
    {xt}
    s_lshr_b32 s38, s59, 6
    s_lshl_b32 s38, s38, 5
    s_and_b32 s41, s2, 31
    s_add_u32 s38, s38, s41
    s_add_u32 s59, s59, 96
    s_bitcmp1_b32 s2, 5
    s_cselect_b32 s59, s38, s59
    s_cmp_ge_u32 s59, {20*NP}
    s_cbranch_scc1 {Lnu}
    s_mul_i32 s38, s59, {mu}
    s_lshr_b32 s38, s38, {sh}
    s_mul_i32 s41, s38, {NP}
    s_sub_u32 s41, s59, s41
    """)
    emit, vm = simple_emit(k)
    gv = gemv(k, emit, 20//NP, VFL, 24)
    next(gv)
    k(f"""
    s_mul_i32 s42, s41, 5120
    s_lshl1_add_u32 s42, s39, s42
    s_add_u32 s42, s42, {WS_PART}
    s_lshl_b32 s43, s59, 11
    s_add_u32 s43, s43, {WS_FLAGF}
    s_lshl4_add_u32 s44, s29, s59
    s_cmp_lt_u32 s44, 16
    s_cselect_b32 s43, s43, 0x40000000
    s_cmp_eq_u32 s29, 0
    s_cselect_b32 s42, s42, 0x40000000
    v_lshlrev_b32 v2, 2, v17
    v_lshlrev_b32 v3, 5, v{VFL}
    v_mov_b32 v4, -1
    v_mov_b32 v5, 0
    """)
    setup()
    emit(("vm", "clr", f"buffer_store_dword v4, v2, {WS}, s42 offen sc1"))
    emit(("vm", "clr", f"buffer_store_dword v5, v3, {WS}, s43 offen sc1"))
    next(gv)
    k(xtl)
    if XT: vm.op("xt")
    k("v_lshlrev_b32 v2, 24, v0\nv_mov_b32 v3, 1\ns_and_b32 s42, s59, 1\ns_lshl_b32 s42, s42, 7")
    emit(("wait", ["clr"], []))
    emit(("vm", "cnt", "buffer_atomic_add v3, v2, s[24:27], s42 offen sc1"))
    next(gv)
    stamp(k, 1)
    next(gv); next(gv)
    stamp(k, 2)
    k(f"s_branch {Lw}\n{Lnu}:\ns_waitcnt lgkmcnt(0)\n{xtl}")
    setup()
    stamp(k, 1); stamp(k, 2)
    m5, s5 = magic(5, 15)
    k(f"""
    {Lw}:
    s_and_b32 s28, s2, 1
    s_bfe_u32 s30, s2, 0x30003
    s_lshl3_add_u32 s28, s28, s30      ; cluster
    s_bfe_u32 s31, s2, 0x10006
    s_cmp_lt_u32 s2, 128
    s_cselect_b32 s31, 2, s31          ; 0 = Q, 1 = K, 2 = V
    s_bfe_u32 s32, s2, 0x20001
    s_lshl2_add_u32 s30, s31, s32
    s_mul_i32 s35, s30, 320
    v_lshrrev_b32 v18, 4, v17          ; q
    v_lshlrev_b32 v{VL}, 4, v17
    v_bfe_u32 v19, v17, 2, 2           ; r
    v_and_b32 v20, 3, v17
    v_lshl_add_u32 v21, v16, 4, v19    ; 16w + r
    s_mul_i32 s56, s28, {m5}
    s_lshr_b32 s56, s56, {s5}
    s_mul_i32 s56, s56, 5
    s_sub_u32 s56, s28, s56
    s_mul_i32 s57, s56, {128*3840}
    s_add_u32 s35, s35, s57
    s_add_u32 s4, s4, s35
    s_addc_u32 s5, s5, 0
    s_lshl_b32 s57, s56, 1
    s_sub_u32 s57, 10, s57
    s_lshr_b32 s33, s29, 1
    s_and_b32 s34, s29, 1
    s_mul_i32 s36, s29, 5120
    s_add_u32 s36, s36, {WB}
    s_lshl_b32 s37, s28, 11
    s_add_u32 s37, s37, {WS_FLAGF}
    """)
    for i in range(5):
        k(f"""
        v_add_u32 v22, {4*i}, v18
        v_mul_u32_u24 v23, 13, v22
        v_lshrrev_b32 v23, 6, v23
        v_mul_u32_u24 v24, 5, v23
        v_sub_u32 v22, v22, v24
        v_and_b32 v24, 2, v23
        v_xor_b32 v24, v24, v20
        v_lshl_add_u32 v23, v23, 2, v21
        v_mul_u32_u24 v23, 3840, v23
        v_lshl_add_u32 v23, v22, 6, v23
        s_add_u32 m0, s36, {1024*i}
        v_lshl_add_u32 v{VD+i}, v24, 4, v23
        global_load_lds_dwordx4 v{VD+i}, s[4:5]
        """)
    k(f"s_add_u32 s4, s4, {64*3840}\ns_addc_u32 s5, s5, 0")
    k(f"""
    v_mul_u32_u24 v22, 2560, v18
    v_lshl_add_u32 v22, v19, 6, v22
    v_add_u32 v22, {WB}, v22
    v_and_b32 v23, 1, v18
    v_lshlrev_b32 v23, 2, v23
    s_mul_i32 s38, s34, 20
    """)
    for t in range(5):
        k(f"v_add3_u32 v24, s38, v20, {5*t}" if t < 4 else "v_mul_u32_u24 v24, 5, v20\nv_add3_u32 v24, s38, v24, 4")
        k(f"""
        v_lshrrev_b32 v25, 3, v24
        v_and_b32 v24, 7, v24
        v_xor_b32 v24, v24, v23
        v_lshl_add_u32 v25, v25, 8, v22
        v_lshl_add_u32 v{VT+t}, v24, 3, v25
        """)
    def tools():
        vm, lg = Track(k, "vmcnt", 63), Track(k, "lgkmcnt", 15)
        def emit(x):
            if isinstance(x, str): k(x); return
            if x[0] == "call": x[1]()
            elif x[0] == "vm": k(x[2]); vm.op(x[1])
            elif x[0] == "lg": k(x[2]); lg.op(x[1])
            elif x[0] == "wait":
                p = []
                for tr, tags in ((vm, x[1]), (lg, x[2])):
                    n = tr.n(*tags) if tags else None
                    if n is not None:
                        n = min(n, tr.mx); p.append(f"{tr.name}({n})"); tr.done(n)
                if p: k("s_waitcnt " + " ".join(p))
        sc = Sched(k, emit)
        sn = [0]
        def st_():
            sn[0] += 1; stamp(k, sn[0])
        def wdma(c):
            L = []
            for i in range(5):
                L += [f"s_add_u32 m0, s36, {(c % 5)*20480 + 1024*i}", ("vm", f"w{c}", f"global_load_lds_dwordx4 v{VD+i}, s[4:5]")]
            return L + [f"s_cmp_eq_u32 s57, {c+1}", f"s_cselect_b32 s58, {640*3840}, 0", f"s_add_u32 s4, s4, {64*3840}", "s_addc_u32 s5, s5, 0",
                        "s_sub_u32 s4, s4, s58", "s_subb_u32 s5, s5, 0"]
        def wchunk(c):
            emit(("wait", [f"w{c}"], [f"t{c-1}"] if c else [])); k("s_barrier")
            R = [("lg", f"t{c}", f"ds_read_b64_tr_b16 {wreg2(5*(2*c+s)+t, jj)}, v{VT+t} offset:{(8*s+jj)*1280}") for s in range(2) for t in range(5) for jj in range(2)]
            D = wdma(c+NW0) if c + NW0 < 10 else []
            for i in range(5):
                for x in D[2*i:2*i+1] + R[4*i:4*i+2] + D[2*i+1:2*i+2] + R[4*i+2:4*i+4]: emit(x)
            for x in D[10:]: emit(x)
            if c < 9:
                for t in range(5): k(f"v_add_u32 v{VT+t}, 20480, v{VT+t}" if c % 5 < 4 else f"v_subrev_u32 v{VT+t}, {4*20480}, v{VT+t}")
        def poll(name, first, retry, issue=True, val=1):
            L, Lok = k.label("poll"), k.label("ok")
            if issue: emit(("vm", name, first))
            emit(("wait", [name], []))
            slow.append(spin(L, Lok, retry, f"v_cmp_ne_u32 vcc, {val}, v14"))
            k(f"v_cmp_ne_u32 vcc, {val}, v14\ns_cbranch_vccnz {L}\n{Lok}:")
        return vm, lg, emit, sc, sn, st_, wdma, wchunk, poll
    vm, lg, emit, sc, sn, st_, wdma, wchunk, poll = tools()
    for i in range(5): vm.op("w0")
    sn[0] = 2
    for c in range(1, NW0): sc.flush(wdma(c))
    st_()
    for c in range(SPL): wchunk(c)
    k(f"s_cmp_eq_u32 s31, 2\ns_cbranch_scc1 {Lv}")
    vm0, lg0 = vm, lg
    def path(vt):
        vm, lg, emit, sc, sn, st_, wdma, wchunk, poll = tools()
        for a, b in ((vm, vm0), (lg, lg0)): a.seq = list(b.seq); a.seen = set(b.seen)
        sn[0] = 3
        pdma, prd, pst, nf = side_job(k, vt, list(range(32, 40)), 24)
        fr = [OUT + 4*f if f < 5 else 108 for f in range(nf)]
        emit(("vm", "go", go))
        sc.flush([x for b in pdma for x in b])
        for c in range(SPL, 10): wchunk(c)
        st_()
        poll("go", go, go, False, 10*NP)
        st_()
        hs = "s46"
        hoff = "\n".join(f"s_add_u32 s{58+j}, s56, {j}\ns_cmp_ge_u32 s{58+j}, 5\ns_cselect_b32 s38, 5, 0\ns_sub_u32 s{58+j}, s{58+j}, s38\ns_lshl_b32 s{58+j}, s{58+j}, 13\ns_add_u32 s{58+j}, s{58+j}, s40" for j in range(5))
        k(f"""
        s_lshl_b32 s42, s28, 2
        s_lshl1_add_u32 s42, s33, s42
        s_mul_i32 s40, s42, 40960
        s_lshl_b32 s41, s34, 12
        s_add_u32 s40, s40, s41
        s_add_u32 s40, s40, {WS_XH}
        s_add_u32 s40, s40, s6
        s_mov_b32 s41, s7
        {hoff}
        s_lshl_b32 s44, s29, 12
        v_and_b32 v19, 15, v17
        v_lshlrev_b32 v20, 4, v19
        v_lshl_add_u32 v20, v18, 9, v20
        s_lshl_b32 s38, s33, 13
        v_add_u32 v{VLA}, s38, v20
        v_add_u32 v{VLA+1}, 65536, v{VLA}
        v_add_u32 v{VLA+2}, 131072, v{VLA}
        s_mov_b32 s47, {KVT}
        s_mov_b32 s48, {WS_KV}
        s_cmp_eq_u32 s31, 0
        s_cselect_b32 s47, {QT}, s47
        s_cselect_b32 s48, {WS_Q}, s48
        s_cselect_b32 s50, {f32(20**-0.5*LOG2E)}, 1.0
        s_mov_b32 s51, s50
        s_lshl_b32 s46, s47, 6
        s_mul_i32 s42, s42, s47
        s_add_u32 s48, s48, s42
        s_lshl1_add_u32 s42, s32, s34
        s_lshl_b32 s42, s42, 2
        s_mul_i32 s42, s42, s46
        s_add_u32 s52, s48, s42
        s_add_u32 s53, s52, s46
        s_add_u32 s54, s53, s46
        s_add_u32 s55, s54, s46
        """)
        if not vt: k(f"v_mul_lo_u32 v{VO1}, {hs}, v18\nv_lshl_add_u32 v{VO1}, v19, 3, v{VO1}")
        else: k(f"""
        v_lshrrev_b32 v21, 2, v19
        v_mul_lo_u32 v21, {hs}, v21
        v_lshl_add_u32 v21, v18, 6, v21
        v_and_b32 v22, 3, v19
        v_lshl_add_u32 v{VO1}, v22, 4, v21
        v_lshrrev_b32 v21, 3, v17
        v_mul_lo_u32 v21, {hs}, v21
        v_lshl_add_u32 v21, v{VFL}, 2, v21
        v_lshrrev_b32 v22, 5, v17
        v_lshl_add_u32 v{VO2}, v22, 30, v21
        v_mov_b32 v8, 0x3f803f80
        v_mov_b32 v9, 0x3f803f80
        v_mov_b32 v10, 0x3f803f80
        v_mov_b32 v11, 0x3f803f80
        """)
        emit(("wait", ["pk"], [])); k("s_barrier")
        for f in range(nf):
            for x in prd(f, fr[f]): emit(x)
        emit(("wait", [], ["pr", "t9"])); k("s_barrier")
        k(f"v_and_b32 v15, 3, v17\nv_lshlrev_b32 v15, 7, v15")
        hp = f"buffer_load_dword v14, v15, {WS}, s37 offen sc1"
        poll("hp", hp, hp)
        st_()
        def hdma(u):
            return [[f"s_add_u32 m0, s44, {16384*u}", f"s_add_u32 s40, s{58 + u % 5}, {40960*(u//5)}"]] + \
                   [[("vm", f"u{u}", f"global_load_lds_dwordx4 v{VL}, s[40:41] offset:{1024*i} sc1")] for i in range(4)]
        for u in range(NH0): sc.flush([x for b in hdma(u) for x in b])
        def aread(gk, t):
            o = 16384*(gk >> 2) + 2048*(gk & 3) + 256*t
            return ("lg", f"a{gk}", f"ds_read_b128 {vr(AR+8*(gk % 3)+4*t, 4)}, v{VLA + (o >> 16)} offset:{o & 0xffff}")
        emit(("wait", ["u0"], ["t9"])); k("s_barrier")
        st_()
        for gk in range(2):
            for t in range(2): emit(aread(gk, t))
        def mfma(gk, t, j):
            d = vr(ACC + 20*t + 4*j, 4); w = wreg(5*(gk % 20) + j); x = vr(AR+8*(gk % 3)+4*t, 4)
            a, b = (x, w) if vt else (w, x)
            return f"v_mfma_f32_16x16x32_bf16 {d}, {a}, {b}, {d if gk % 20 else 0}"
        def conv(t, j, packed):
            a = ACC + 20*t + 4*j; o = OUT + 4*j + 2*t
            L = []
            if not vt: L = [f"v_pk_mul_f32 {P(a,i)}, {P(a,i)}, s[50:51]" for i in range(2)] if packed else [f"v_mul_f32 v{a+i}, s50, v{a+i}" for i in range(4)]
            return L + [f"v_cvt_pk_bf16_f32 v{o+i}, v{a+2*i}, v{a+2*i+1}" for i in range(2)]
        def stores(j, ph):
            o = OUT + 4*j
            sw = [f"v_permlane16_swap_b32 v{o}, v{o+2}", f"v_permlane16_swap_b32 v{o+1}, v{o+3}"]
            if j < 4: return sw + [("vm", "out", f"buffer_store_dwordx4 {vr(o, 4)}, v{VL}, {WS}, s{52+j} offen offset:{1280*vt}{STSC}")]
            if not vt: return [("vm", "out", f"buffer_store_dwordx2 {vr(o+2*t, 2)}, v{VO1}, {WS}, s52 offen offset:{1024 + 128*t}{STSC}") for t in range(2)]
            return sw + [("vm", "out", f"buffer_store_dwordx4 {vr(o, 4)}, v{VO1}, {WS}, s52 offen offset:2304{STSC}"),
                         ("vm", "out", f"buffer_store_dwordx4 v[8:11], v{VO2}, {WS}, s52 offen offset:2560{STSC}")]
        def segment(g0, g1, work):
            mf, pins, rq, lq = [], {}, [], []
            for gk in range(g0, g1):
                n = 10*(gk - g0)
                if gk % 4 == 2 and gk + 2 < 40: pins[n-2] = [("wait", [f"u{(gk+2) >> 2}"], []), "s_barrier"]
                pins[n-1] = [("wait", [], [f"a{gk}"])]
                mf += [mfma(gk, t, j) for t in range(2) for j in range(5)]
                if gk + 2 < 40: rq += [(n, n+3+t, aread(gk+2, t)) for t in range(2)]
            if g0 == 0:
                for u in range(NH0, 10): lq += spread(hdma(u), HD*(u-NH0), HD*(u-NH0+1))
                lq += spread([[pst(f, fr[f])] for f in range(nf)], PSG, PSG + 30)
            left, rest = sc.run(mf, pins, [rq, lq], work)
            sc.flush(rest + left)
        n0 = len(k.L)
        segment(0, 20, [])
        st_()
        emit(("wait", [], ["a20"]))
        for t in range(2):
            for j in range(5):
                sc.flush(conv(t, j, False) + [mfma(20, t, j)] + ([aread(22, t)] if j == 0 else []))
        segment(21, 40, [x for j in range(5) for x in stores(j, 0)] + [f"s_add_u32 s{52+j}, s{52+j}, s47" for j in range(4)])
        if os.environ.get("REP"): print("  qkv main est", simulate(k.L[n0:]))
        st_()
        for j in range(5):
            sc.flush(conv(0, j, True) + conv(1, j, True) + (stores(j-1, 1) if j else []))
        sc.flush(stores(4, 1))
        stamp_flush(k, 0, sn[0]+2, 20)
        k("s_endpgm")
    path(False)
    k(f"{Lv}:")
    path(True)
    vm, lg, emit, sc, sn, st_, wdma, wchunk, poll = tools()
    XR, XF, MS, SB, TM = 24, 64, 144, 144, 4
    MB = 40960
    k(f"""
    {Lh}:
    s_mov_b32 s10, {2048*1280}
    s_mov_b32 s11, 0x20000
    s_lshl2_add_u32 s38, s2, s29
    s_mul_i32 s38, s38, 10240
    s_mul_i32 s40, s29, 10240
    """)
    for i in range(5): k(f"v_add_u32 v22, {64*i}, v17\n{vdiv(23, 22, 80, 319)}\nv_lshlrev_b32 v23, 1, v23\nv_xor_b32 v22, v22, v23\nv_lshlrev_b32 v{24+i}, 4, v22\nv_xor_b32 v{29+i}, 128, v{24+i}")
    k("s_add_u32 s39, s38, 5120\ns_mov_b32 m0, s40\ns_waitcnt lgkmcnt(0)")
    for i in range(10):
        emit(("vm", "xa" if i < env("XA", 4) else "x", f"buffer_load_dwordx4 v{24+i}, s[8:11], s{38 + i//5} offen lds"))
        if i < 9: k(f"s_add_u32 m0, s40, {1024*(i+1)}\ns_nop 0")
    setup()
    ml = [f"buffer_load_dwordx4 {vr(MS+4*i, 4)}, v15, {WS}, s{50 + (i >> 1)} offen offset:{2560*(i & 1)} sc1" for i in range(2*NP)]
    mt = "\n".join([f"v_max3_u32 v14, v{MS}, v{MS+1}, v{MS+2}"] + [f"v_max3_u32 v14, v14, v{MS+i}, v{MS+i+1}" for i in range(3, 8*NP-1, 2)] + [f"v_max_u32 v14, v14, v{MS+8*NP-1}", "v_cmp_eq_u32 vcc, -1, v14"])
    k(f"""
    v_and_b32 v18, 7, v17              ; row
    v_lshrrev_b32 v19, 3, v17
    v_lshlrev_b32 v20, 1, v18
    v_xor_b32 v20, v20, v19
    v_mul_u32_u24 v21, 80, v18
    v_add_lshl_u32 v20, v20, v21, 4
    v_add_u32 v20, s40, v20
    v_xor_b32 v21, 128, v20
    s_mul_i32 s39, s29, 640
    {chr(10).join(f"s_add_u32 s{50+p}, s39, {WS_PART + 5120*p}" for p in range(NP))}
    v_min_u32 v15, 39, v17
    v_lshlrev_b32 v15, 4, v15
    s_add_u32 s39, s39, {MB}
    v_add_u32 v22, s39, v15
    v_lshlrev_b32 v23, 5, v19
    v_lshlrev_b32 v2, 9, v19
    v_lshl_add_u32 v2, v18, 4, v2
    v_lshl_add_u32 v2, v16, 7, v2
    s_mul_i32 s42, s2, 40960
    s_add_u32 s42, s42, {WS_XH}
    s_lshr_b32 s43, s2, 2
    s_lshl_b32 s43, s43, 4
    s_and_b32 s44, s2, 3
    s_add_u32 s43, s43, s44
    s_lshl_b32 s43, s43, 7
    s_add_u32 s43, s43, {WS_FLAGF}
    """)
    if GOE: emit(("wait", ["xa"], [])); emit(("vm", "go", go))
    emit(("wait", ["x"], []))
    if not GOE: emit(("vm", "go", go))
    for i in range(10): emit(("lg", f"x{i}", f"ds_read_b128 {vr(XR+4*i, 4)}, v{20 + (i & 1)} offset:{256*(i >> 1)}"))
    st_()
    SU, SQ = TM, TM+2
    for i in range(10):
        if GOE and i == env("GOI", 2):
            poll("go", go, go, False, 10*NP)
            for x in ml: emit(("vm", "m", x))
        emit(("wait", [], [f"x{i}"]))
        for j in range(4*i, 4*i+4): k(f"v_lshlrev_b32 v{XF+2*j}, 16, v{XR+j}\nv_and_b32 v{XF+2*j+1}, s45, v{XR+j}")
        for j in range(4*i, 4*i+4):
            if j == 0: k(f"v_pk_add_f32 {P(SU,0)}, {P(XF,0)}, {P(XF,1)}\nv_pk_mul_f32 {P(SQ,0)}, {P(XF,0)}, {P(XF,0)}")
            else:
                if j > 1: k(f"v_pk_add_f32 {P(SU,0)}, {P(SU,0)}, {P(XF,j)}")
                k(f"v_pk_fma_f32 {P(SQ,0)}, {P(XF,j)}, {P(XF,j)}, {P(SQ,0)}")
    if not GOE:
        poll("go", go, go, False, 10*NP)
        for x in ml: emit(("vm", "m", x))
    sc.flush([f"v_add_f32 v{SU}, v{SU}, v{SU+1}", f"v_add_f32 v{SU+1}, v{SQ}, v{SQ+1}",
              f"v_permlane32_swap_b32 v{SU}, v{SU+1}", f"v_add_f32 v{SQ}, v{SU}, v{SU+1}",
              f"v_add_f32_dpp v{SQ}, v{SQ}, v{SQ} row_ror:8 row_mask:0xf bank_mask:0xf", f"v_mov_b32 v{SQ+1}, v{SQ}",
              f"v_permlane16_swap_b32 v{SQ}, v{SQ+1}", f"v_add_f32 v{SU}, v{SQ}, v{SQ+1}", f"v_add_f32 v{SU+1}, v{SQ}, v{SQ+1}",
              f"v_permlane32_swap_b32 v{SU}, v{SU+1}",
              f"v_mul_f32 v{TM}, {f32(-1.0/640)}, v{TM}", f"v_mul_f32 v{TM+1}, {f32(1.0/640)}, v{TM+1}",
              f"v_fma_f32 v{TM+1}, -v{TM}, v{TM}, v{TM+1}", f"v_max_f32 v{TM+1}, 0, v{TM+1}", f"v_add_f32 v{TM+1}, {f32(1e-5)}, v{TM+1}",
              f"v_rsq_f32 v{TM+1}, v{TM+1}", f"v_mul_f32 v{TM}, v{TM}, v{TM+1}"])
    for j in range(40): k(f"v_pk_fma_f32 {P(XF,j)}, {P(XF,j)}, {P(TM,0)}, {P(TM,0)} op_sel:[0,1,0] op_sel_hi:[1,1,0]")
    L, Lok = k.label("poll"), k.label("ok")
    emit(("wait", ["m"], []))
    slow.append(spin(L, Lok, "\n".join(ml), mt))
    k(f"{mt}\ns_cbranch_vccnz {L}\n{Lok}:")
    st_()
    for p in range(1, NP):
        for j in range(4): k(f"v_pk_add_f32 {P(MS,j)}, {P(MS,j)}, {P(MS+8*p,j)}")
    for j in range(4): k(f"v_cvt_pk_bf16_f32 v{MS+8+j}, v{MS+2*j}, v{MS+2*j+1}")
    for j in range(4): k(f"v_lshlrev_b32 v{MS+2*j}, 16, v{MS+8+j}\nv_and_b32 v{MS+2*j+1}, s45, v{MS+8+j}")
    k(f"ds_write_b128 v22, {vr(MS, 4)}")
    for j in range(2, 4): k(f"v_pk_add_f32 {P(MS,j)}, {P(MS,j)}, 1.0 op_sel_hi:[1,0]")
    for j in range(2, 4): k(f"v_cvt_pk_bf16_f32 v{MS+8+j}, v{MS+2*j}, v{MS+2*j+1}")
    for j in range(2, 4): k(f"v_lshlrev_b32 v{MS+2*j}, 16, v{MS+8+j}\nv_and_b32 v{MS+2*j+1}, s45, v{MS+8+j}")
    k(f"ds_write_b128 v22, {vr(MS+4, 4)} offset:2560\ns_waitcnt lgkmcnt(0)\ns_barrier")
    def rd(i):
        for n in range(4): emit(("lg", f"mr{i}", f"ds_read_b128 {vr(SB+16*(i % 4)+4*n, 4)}, v23 offset:{MB + 2560*(n >> 1) + 256*i + 16*(n & 1)}"))
    for i in range(3): rd(i)
    for i in range(10):
        if i + 3 < 10: rd(i+3)
        emit(("wait", [], [f"mr{i}"]))
        a = SB + 16*(i % 4); x = XF + 8*i
        for j in range(4): k(f"v_pk_fma_f32 {P(x,j)}, {P(x,j)}, {P(a+8,j)}, {P(a,j)}")
        for j in range(4): k(f"v_cvt_pk_bf16_f32 v{x+j}, v{x+2*j}, v{x+2*j+1}")
        emit(("vm", "h", f"buffer_store_dwordx4 {vr(x, 4)}, v2, {WS}, s42 offen sc1"))
        if i < 9: k("s_add_u32 s42, s42, 4096")
    k("v_cmp_eq_u32 vcc, 0, v0\nv_mov_b32 v22, 0x40000000\nv_mov_b32 v15, 1\nv_cndmask_b32_e64 v22, v22, 0, vcc")
    emit(("wait", ["h"], [])); k("s_barrier")
    k(f"buffer_store_dword v15, v22, {WS}, s43 offen sc1")
    emit, vm = simple_emit(k)
    Ln1, Ln2 = k.label("nog"), k.label("fin")
    stamp(k, 3)
    k(f"s_cmp_ge_u32 s2, 40\ns_cbranch_scc1 {Ln1}\ns_add_u32 s38, s2, 20\ns_mov_b32 s41, 0")
    for _ in gemv(k, emit, 20, VFL, 64): pass
    k(f"s_cmp_ge_u32 s2, 8\ns_cbranch_scc1 {Ln2}\n{Ln1}:")
    pack(k)
    k(f"{Ln2}:")
    stamp(k, 4)
    k(f"""
    v_mov_b32 v4, 0
    v_lshlrev_b32 v2, 2, v0
    s_lshl_b32 s13, s2, 10
    s_add_u32 s13, s13, {WS_FLAG}
    buffer_store_dword v4, v2, s[20:23], s13 offen
    """)
    code_prefetch(k, "back_kernel", 16, 56, 2, 3)
    for i in range(5, 10): stamp(k, i)
    stamp_flush(k, 0, 11, 20)
    k(f"{Lend}:\ns_endpgm")
    for x in slow: k(x)
    return k, dict(grid=256, block=256, lds=163840, vgpr=512, accum=256, sgpr=102)
```

```python
from common import *
def pack(k):
    k(f"""
    s_load_dwordx2 s[32:33], s[0:1], {A_WO}
    s_load_dwordx2 s[4:5], s[0:1], {A_WG}
    s_load_dwordx2 s[8:9], s[0:1], {A_WU}
    s_load_dwordx2 s[60:61], s[0:1], {A_WD}
    """)
    nit = 4
    nxt = lambda cnt, unit: "s_add_u32 s48, s48, s58\ns_cmp_ge_u32 s48, 232\ns_cselect_b32 s48, 296, s48"
    k(f"""
    s_mov_b32 s58, 24
    s_cmp_lt_u32 s2, 40
    s_cselect_b32 s59, 136, 0
    s_add_u32 s59, s59, s2
    v_lshrrev_b32 v18, 4, v17          ; q
    v_bfe_u32 v34, v17, 2, 2           ; r
    v_and_b32 v35, 3, v17              ; c / piece
    v_lshlrev_b32 v1, 4, v17
    """)
    for i in range(5):
        k(f"""
        v_add_u32 v36, {4*i}, v18
        v_cmp_le_u32 vcc, 10, v36
        v_mul_u32_u24 v22, 1280, v34
        v_lshl_add_u32 v22, v35, 4, v22
        v_cndmask_b32_e64 v{7+i}, 0, 1, vcc
        v_mul_u32_u24 v23, 10, v{7+i}
        v_sub_u32 v36, v36, v23
        v_lshl_add_u32 v{2+i}, v36, 6, v22
        """)
    for i in range(3):
        k(f"""
        v_add_u32 v36, {4*i}, v18
        v_cmp_le_u32 vcc, 6, v36
        v_lshlrev_b32 v22, 4, v35
        s_nop 0
        v_cndmask_b32_e64 v23, 0, 1, vcc
        v_lshl_add_u32 v24, v23, 2, v34
        v_mul_u32_u24 v24, 3072, v24
        v_mul_u32_u24 v23, 6, v23
        v_sub_u32 v36, v36, v23
        v_lshl_add_u32 v22, v36, 6, v22
        v_add_u32 v{37+i}, v22, v24
        """)
    k(f"""
    v_mul_u32_u24 v36, 5120, v18
    v_lshl_add_u32 v36, v34, 6, v36
    v_mul_u32_u24 v22, 10, v16
    """)
    for n in range(3):
        if n < 2: k(f"v_add3_u32 v23, v22, v35, {4*n}\nv_mov_b32 v31, 0")
        else: k("v_lshrrev_b32 v23, 1, v35\nv_add3_u32 v23, v22, v23, 8\nv_and_b32 v31, 1, v35\nv_lshlrev_b32 v31, 3, v31")
        k(f"""
        v_lshrrev_b32 v32, 2, v23
        v_and_b32 v23, 3, v23
        v_lshl_add_u32 v32, v32, 8, v36
        v_lshl_add_u32 v32, v23, 4, v32
        v_add_u32 v{24+n}, v32, v31
        """)
    k(f"""
    v_mul_u32_u24 v36, 6144, v18
    v_lshl_add_u32 v36, v34, 6, v36
    v_mul_u32_u24 v22, 12, v16
    """)
    for n in range(4):
        e, mixed = n >> 1, n & 1
        if not mixed: k(f"v_add3_u32 v23, v22, v35, {6*e}\nv_mov_b32 v31, 0")
        else: k(f"v_and_b32 v23, 1, v35\nv_add3_u32 v23, v22, v23, {6*e+4}\nv_lshrrev_b32 v31, 1, v35\nv_mul_u32_u24 v31, 3072, v31")
        k(f"""
        v_lshrrev_b32 v32, 3, v23
        v_and_b32 v23, 7, v23
        v_lshl_add_u32 v32, v32, 8, v36
        v_lshl_add_u32 v32, v23, 3, v32
        v_add_u32 v{27+n}, v32, v31
        """)
    k("v_mov_b32 v15, 0x40000000\ns_waitcnt lgkmcnt(0)")
    for d, n in ((32, 640*1280), (4, 640*3072), (8, 640*3072), (60, 1536*1280)): k(f"s_mov_b32 s{d+2}, {n}\ns_mov_b32 s{d+3}, 0x20000")
    L1, L1o, L1d, L1n, L1t, L1m = [k.label(x) for x in ("l1", "l1od", "l1dn", "l1nx", "l1t", "l1m")]
    k(f"""
    s_add_u32 s48, s59, 88
    s_mov_b32 s49, 0
    {L1}:
    s_cmp_ge_u32 s48, 160
    s_cbranch_scc1 {L1o}
    s_lshr_b32 s50, s48, 3             ; ks
    s_and_b32 s51, s48, 7
    s_lshl_b32 s50, s50, 2
    s_add_u32 s50, s50, s29
    s_mul_i32 s50, s50, {8*3072}
    s_mul_i32 s51, s51, 384
    s_add_u32 s50, s50, s51
    s_mul_i32 s51, s29, 6144
    s_add_u32 s51, s51, s49
    """)
    for i in range(6):
        k(f"s_add_u32 m0, s51, {1024*i}\ns_nop 0\nbuffer_load_dwordx4 v{37+i%3}, s[{4+4*(i//3)}:{7+4*(i//3)}], s50 offen lds")
    k(f"""
    s_branch {L1n}
    {L1o}:
    s_and_b32 s52, s48, 1
    s_mul_i32 s52, s52, 640
    s_mul_i32 s51, s29, 5120
    s_add_u32 s51, s51, s49
    s_cmp_ge_u32 s48, 200
    s_cbranch_scc1 {L1d}
    s_sub_u32 s50, s48, 160
    s_lshr_b32 s50, s50, 1             ; ks
    s_mul_i32 s54, s50, 52
    s_lshr_b32 s54, s54, 8             ; G = ks/5
    s_mul_i32 s55, s54, 5
    s_sub_u32 s55, s50, s55            ; r
    s_mul_i32 s54, s54, 40
    s_cmp_eq_u32 s55, 4
    s_cbranch_scc1 {L1t}
    s_lshr_b32 s53, s29, 1
    s_lshl1_add_u32 s55, s55, s53
    s_mul_i32 s55, s55, 5
    s_add_u32 s54, s54, s55
    s_and_b32 s53, s29, 1
    s_add_u32 s54, s54, s53
    s_mov_b32 s55, {2*5120}
    s_branch {L1m}
    {L1t}:
    s_mul_i32 s53, s29, 10
    s_add_u32 s54, s54, s53
    s_add_u32 s54, s54, 4
    s_mov_b32 s55, {5*5120}
    {L1m}:
    s_mul_i32 s54, s54, 5120
    s_add_u32 s54, s54, s52
    """)
    for i in range(5):
        k(f"s_add_u32 m0, s51, {1024*i}\nv_mad_u32_u24 v33, v{7+i}, s55, v{2+i}\nbuffer_load_dwordx4 v33, s[32:35], s54 offen lds")
    k(f"""
    s_add_u32 m0, s49, 20480
    s_nop 0
    buffer_load_dwordx4 v15, s[32:35], 0 offen lds
    s_branch {L1n}
    {L1d}:
    s_sub_u32 s50, s48, 200
    s_lshr_b32 s50, s50, 1
    s_lshl_b32 s50, s50, 2
    s_add_u32 s50, s50, s29
    s_mul_i32 s54, s50, {8*1280}
    s_add_u32 s54, s54, s52
    s_movk_i32 s55, 5120
    """)
    for i in range(5):
        k(f"s_add_u32 m0, s51, {1024*i}\nv_mad_u32_u24 v33, v{7+i}, s55, v{2+i}\nbuffer_load_dwordx4 v33, s[60:63], s54 offen lds")
    k(f"""
    s_add_u32 m0, s49, 20480
    s_nop 0
    buffer_load_dwordx4 v15, s[60:63], 0 offen lds
    {L1n}:
    s_add_u32 s49, s49, 24576
    {nxt("s49", 24576)}
    s_cmp_lt_u32 s49, {24576*nit}
    s_cbranch_scc1 {L1}
    """)
    k("s_waitcnt vmcnt(0)\ns_barrier")
    L2, L2o, L2n, L2e = [k.label(x) for x in ("l2", "l2od", "l2nx", "l2e")]
    F = 40
    k(f"""
    s_add_u32 s48, s59, 88
    s_mov_b32 s49, 0
    {L2}:
    s_cmp_ge_u32 s48, 296
    s_cbranch_scc1 {L2e}
    s_cmp_ge_u32 s48, 160
    s_cbranch_scc1 {L2o}
    """)
    for e in range(2):
        for t in range(3):
            for jj in range(2):
                r = F + 12*e + 4*t + 2*jj
                k(f"ds_read_b64_tr_b16 v[{r}:{r+1}], v{27+2*e+(t == 2)} offset:{1536*jj + (3072 if t == 1 else 0)}")
    k(f"""
    s_lshr_b32 s50, s48, 3
    s_and_b32 s51, s48, 7
    s_lshl_b32 s51, s51, 2
    s_add_u32 s51, s51, s29
    s_mul_i32 s51, s51, 40
    s_add_u32 s50, s50, s51
    s_mul_i32 s50, s50, 3072
    s_add_u32 s50, s50, {WS_PWG}
    s_add_u32 s51, s50, {20*3072}
    """)
    for e in range(2):
        for t in range(3):
            r = F + 12*e + 4*t
            k(f"s_waitcnt lgkmcnt({10 - 6*e - 2*t})\nbuffer_store_dwordx4 v[{r}:{r+3}], v1, s[20:23], s{50+e} offen offset:{1024*t} sc1")
    k(f"s_branch {L2n}\n{L2o}:")
    for t in range(5):
        for jj in range(2):
            r = F + 4*t + 2*jj
            k(f"ds_read_b64_tr_b16 v[{r}:{r+1}], v{24+t//2} offset:{2560*jj + (8*(t & 1) if t < 4 else 0)}")
    k(f"""
    s_and_b32 s51, s48, 1
    s_lshl_b32 s51, s51, 2
    s_add_u32 s51, s51, s29            ; nb
    s_mov_b32 s52, {WS_PWO}
    s_cmp_ge_u32 s48, 200
    s_cselect_b32 s52, {WS_PWD}, s52
    s_cselect_b32 s53, 48, 20
    s_cselect_b32 s54, 40, 0
    s_sub_u32 s50, s48, 160
    s_sub_u32 s50, s50, s54
    s_lshr_b32 s50, s50, 1
    s_mul_i32 s51, s51, s53
    s_add_u32 s50, s50, s51
    s_mul_i32 s50, s50, 5120
    s_add_u32 s50, s50, s52
    s_add_u32 s51, s50, 4096
    """)
    for t in range(5):
        r = F + 4*t
        k(f"s_waitcnt lgkmcnt({8 - 2*t})\nbuffer_store_dwordx4 v[{r}:{r+3}], v1, s[20:23], s{50+t//4} offen offset:{1024*(t % 4)} sc1")
    k(f"{L2n}:")
    for r in range(24, 31): k(f"v_add_u32 v{r}, 24576, v{r}")
    k(f"""
    s_add_u32 s49, s49, 1
    {nxt("s49", 1)}
    s_cmp_lt_u32 s49, {nit}
    s_cbranch_scc1 {L2}
    {L2e}:
    """)

def side_job(k, down, PA, T):
    r, c, a, b, d, e_ = range(T, T+6)
    nb, rs, nd = (10, 1280, 5) if down else (6, 3072, 3)
    if down: k(f"s_load_dwordx2 s[8:9], s[0:1], {A_WD}\ns_mov_b32 s10, {1536*1280}\ns_mov_b32 s11, 0x20000")
    else: k(f"s_load_dwordx2 s[8:9], s[0:1], {A_WG}\ns_load_dwordx2 s[12:13], s[0:1], {A_WU}\ns_mov_b32 s10, {640*3072}\ns_mov_b32 s11, 0x20000\ns_mov_b32 s14, {640*3072}\ns_mov_b32 s15, 0x20000")
    k(f"v_bfe_u32 v{r}, v17, 2, 2\nv_and_b32 v{c}, 3, v17")
    for i in range(nd):
        k(f"""
        v_add_u32 v{a}, {4*i}, v18
        {vdiv(b, a, nb, 4*nd)}
        v_lshl_add_u32 v{d}, v{b}, 2, v{r}
        v_mul_u32_u24 v{d}, {rs}, v{d}
        v_mul_u32_u24 v{b}, {nb}, v{b}
        v_sub_u32 v{a}, v{a}, v{b}
        v_lshl_add_u32 v{d}, v{a}, 6, v{d}
        v_lshl_add_u32 v{PA[i]}, v{c}, 4, v{d}
        """)
    k(f"v_mul_u32_u24 v{d}, {5120 if down else 6144}, v18\nv_lshl_add_u32 v{d}, v{r}, 6, v{d}\ns_mul_i32 s16, s29, {10 if down else 12}")
    for n in range(3 if down else 4):
        if down:
            if n < 2: k(f"v_add3_u32 v{a}, s16, v{c}, {4*n}\nv_mov_b32 v{e_}, 0")
            else: k(f"v_lshrrev_b32 v{a}, 1, v{c}\nv_add3_u32 v{a}, s16, v{a}, 8\nv_and_b32 v{e_}, 1, v{c}\nv_lshlrev_b32 v{e_}, 3, v{e_}")
        else:
            if not n & 1: k(f"v_add3_u32 v{a}, s16, v{c}, {6*(n >> 1)}\nv_mov_b32 v{e_}, 0")
            else: k(f"v_and_b32 v{a}, 1, v{c}\nv_add3_u32 v{a}, s16, v{a}, {6*(n >> 1)+4}\nv_lshrrev_b32 v{e_}, 1, v{c}\nv_mul_u32_u24 v{e_}, 3072, v{e_}")
        sh = 2 if down else 3
        k(f"""
        v_lshrrev_b32 v{b}, {sh}, v{a}
        v_and_b32 v{a}, {(1 << sh) - 1}, v{a}
        v_lshl_add_u32 v{b}, v{b}, 8, v{d}
        v_lshl_add_u32 v{b}, v{a}, {6 - sh}, v{b}
        v_add_u32 v{PA[nd+n]}, v{b}, v{e_}
        """)
    if down: k(f"""
    s_sub_u32 s18, s2, 32
    s_and_b32 s19, s18, 1
    s_lshr_b32 s18, s18, 1             ; ks
    s_lshl2_add_u32 s16, s18, s29
    s_mul_i32 s16, s16, {8*1280}
    s_mul_i32 s17, s19, 640
    s_add_u32 s16, s16, s17
    s_mul_i32 s17, s29, 5120
    s_lshl2_add_u32 s19, s19, s29
    s_mul_i32 s19, s19, 48
    s_add_u32 s18, s18, s19
    s_mul_i32 s18, s18, 5120
    s_add_u32 s18, s18, {WS_PWD}
    s_add_u32 s19, s18, 4096
    """)
    else: k(f"""
    s_bfe_u32 s18, s2, 0x40003         ; ks
    s_and_b32 s19, s2, 7
    s_lshl2_add_u32 s16, s18, s29
    s_mul_i32 s16, s16, {8*3072}
    s_mul_i32 s17, s19, 384
    s_add_u32 s16, s16, s17
    s_mul_i32 s17, s29, 6144
    s_lshl2_add_u32 s19, s19, s29
    s_mul_i32 s19, s19, 40
    s_add_u32 s18, s18, s19
    s_mul_i32 s18, s18, 3072
    s_add_u32 s18, s18, {WS_PWG}
    s_add_u32 s19, s18, {20*3072}
    """)
    k("s_waitcnt lgkmcnt(0)")
    nf = 5 if down else 6
    dma = [[f"s_add_u32 m0, s17, {1024*i}", ("vm", "pk", f"buffer_load_dwordx4 v{PA[i % nd]}, s[{8+4*(i//nd)}:{11+4*(i//nd)}], s16 offen lds")] for i in range(nf)]
    def reads(f, R):
        if down: return [("lg", "pr", f"ds_read_b64_tr_b16 {vr(R+2*jj, 2)}, v{PA[nd + f//2]} offset:{2560*jj + (8*(f & 1) if f < 4 else 0)}") for jj in range(2)]
        e, t = divmod(f, 3)
        return [("lg", "pr", f"ds_read_b64_tr_b16 {vr(R+2*jj, 2)}, v{PA[nd + 2*e + (t == 2)]} offset:{1536*jj + (3072 if t == 1 else 0)}") for jj in range(2)]
    def store(f, R):
        so, o = (18 + f//4, 1024*(f % 4)) if down else (18 + f//3, 1024*(f % 3))
        return ("vm", "ps", f"buffer_store_dwordx4 {vr(R, 4)}, v1, s[20:23], s{so} offen offset:{o} sc1")
    return dma, reads, store, nf
```

```python
import sys, importlib
import common
from common import *
def build(kernels, path):
    head = open("cdna_kernels/" + NAME + ".s.ref").read().split("; Override launch")[0]
    launches, codes, kds = [], [], []
    for fn in kernels:
        k, cfg = fn()
        code, kd = kernel_text(k, cfg["vgpr"], cfg.get("sgpr", 96), cfg.get("accum"))
        launches.append(f"; @launch kernel={k.name}_kernel grid=({cfg['grid']},1,1) block=({cfg['block']},1,1) lds={cfg['lds']}")
        codes.append(code); kds.append(kd)
    txt = head + "\n".join(launches) + '\n.amdgcn_target "amdgcn-amd-amdhsa--gfx950"\n' + "".join(codes) + 'L_text_end:\n.section .rodata,"a"\n' + "".join(kds)
    open(path, "w").write(txt)
if __name__ == "__main__":
    out = sys.argv[1]
    if "diag" in sys.argv[2:]: common.DIAG = True
    from front import front
    from back import back
    build([front, back], out)
```
